```python
import torch

def _softmax(x, axis=-1):
    return torch.softmax(x, dim=axis)

def _gelu(x):
    return torch.nn.functional.gelu(x, approximate='tanh')

def _silu(x):
    return torch.nn.functional.silu(x)

def _sigmoid(x):
    return torch.sigmoid(x)

def _layernorm(x, axis=-1, eps=1e-05):
    m = x.mean(dim=axis, keepdim=True)
    v = x.var(dim=axis, keepdim=True, unbiased=False)
    return (x - m) / torch.sqrt(v + eps)

def _scatter_add(tgt, idx, src, axis=0):
    return tgt.clone().index_add_(axis, idx, src)

def _segment_sum(src, seg, n):
    out = torch.zeros((n,) + src.shape[1:], dtype=src.dtype)
    return out.index_add_(0, seg, src)

def _pad(x, pw):
    flat = tuple((v for pair in reversed(pw) for v in pair))
    return torch.nn.functional.pad(x, flat)
kernel_name = 'standalone__dit_adaln_block__diffusion'

def setup_inputs():

    _w = lambda a: (lambda t: t.to(torch.bfloat16) if t.is_floating_point() else t)(torch.as_tensor(a))
    B, N, D = (2, 1024, 384)
    return {'x': _w((lambda *s: torch.randn(*s, dtype=torch.bfloat16) * 0.05)(B, N, D)), 'c': _w((lambda *s: torch.randn(*s, dtype=torch.bfloat16) * 0.2)(B, D)), 'wqkv': _w((lambda *s: torch.randn(*s, dtype=torch.bfloat16) * 0.05)(D, 3 * D)), 'wo': _w((lambda *s: torch.randn(*s, dtype=torch.bfloat16) * 0.1)(D, D)), 'w_mod': _w((lambda *s: torch.randn(*s, dtype=torch.bfloat16) * 0.2)(D, 6 * D))}

def reference(x, c, wqkv, wo, w_mod):
    B, N, D = x.shape
    mod = (_silu(c) @ w_mod).reshape(B, 6, 1, D)
    shift_a, scale_a, gate_a, shift_m, scale_m, gate_m = [mod[:, i] for i in range(6)]
    h = _layernorm(x, axis=-1) * (1 + scale_a) + shift_a
    qkv = h @ wqkv
    q, k, v = (qkv[..., :D].clone(), qkv[..., D:2 * D].clone(), qkv[..., 2 * D:].clone())
    p = _softmax(torch.einsum('bqd,bkd->bqk', q, k) * D ** (-0.5), axis=-1)
    a = torch.einsum('bqk,bkd->bqd', p, v) @ wo
    return x + gate_a * a
```

```python
import re

TRANS = ("v_exp_f32", "v_log_f32", "v_rcp_f32", "v_rsq_f32", "v_sqrt_f32", "v_sin_f32", "v_cos_f32")

def regs_of(op):
    op = op.strip()
    op = op.lstrip('-')
    m = re.match(r'^abs\((.*)\)$', op) or re.match(r'^\|(.*)\|$', op)
    if m: op = m.group(1)
    m = re.match(r'^([vas])(\d+)$', op)
    if m: return {(m.group(1), int(m.group(2)))}
    m = re.match(r'^([vas])\[(\d+):(\d+)\]$', op)
    if m: return {(m.group(1), i) for i in range(int(m.group(2)), int(m.group(3)) + 1)}
    if op in ('vcc', 'vcc_lo', 'vcc_hi'): return {('vcc', 0)}
    if op in ('exec', 'exec_lo', 'exec_hi'): return {('exec', 0)}
    if op == 'm0': return {('m0', 0)}
    return set()

def split_ops(s):
    out, depth, cur = [], 0, ''
    for ch in s:
        if ch in '[(': depth += 1
        if ch in '])': depth -= 1
        if ch == ',' and depth == 0:
            out.append(cur.strip()); cur = ''
        else:
            cur += ch
    if cur.strip(): out.append(cur.strip())
    return out

class Ins:
    def __init__(self, text):
        self.text = text
        t = text.split(';')[0].strip()
        self.is_label = t.endswith(':')
        self.is_dir = t.startswith('.') or t == ''
        self.mn = ''
        self.w = set(); self.r = set()
        self.kind = 'other'
        self.ws = 1
        if self.is_label or self.is_dir:
            self.ws = 0
            return
        parts = t.split(None, 1)
        mn = parts[0]; self.mn = mn
        rest = parts[1] if len(parts) > 1 else ''
        ops = split_ops(rest)
        mods = ''
        if ops:
            lp = ops[-1].split(None, 1)
            ops[-1] = lp[0]
            mods = lp[1] if len(lp) > 1 else ''
        self.mods = mods
        R = [regs_of(o) for o in ops]
        base = re.sub(r'_(e32|e64|dpp|sdwa)$', '', mn)
        self.base = base
        self.dpp = ('row_' in mods or 'quad_perm' in mods or 'wave_' in mods or mn.endswith('_dpp'))
        if mn == 's_nop':
            self.ws = int(ops[0], 0) + 1; self.kind = 'salu'
        elif mn.startswith('v_mfma'):
            self.kind = 'mfma'
            self.w = R[0]; self.srcA = R[1]; self.srcB = R[2]; self.srcC = R[3]
            self.r = R[1] | R[2] | R[3]
            self.passes = 8 if '32x32x16' in mn else 4
        elif mn.startswith('v_'):
            self.kind = 'valu'
            if base.startswith('v_cmpx'):
                self.w = R[0] | {('exec', 0)}; self.r = set().union(*R[1:])
            elif base.startswith('v_cmp'):
                self.w = R[0]; self.r = set().union(*R[1:])
            elif base in ('v_permlane32_swap_b32', 'v_permlane16_swap_b32'):
                self.w = R[0] | R[1]; self.r = R[0] | R[1]
            elif base in ('v_add_co_u32', 'v_sub_co_u32', 'v_addc_co_u32', 'v_subb_co_u32'):
                self.w = R[0] | R[1]; self.r = set().union(*R[2:])
            else:
                self.w = R[0]; self.r = set().union(*R[1:]) if len(R) > 1 else set()
                if base in ('v_fmac_f32', 'v_dot2c_f32_bf16', 'v_pk_fmac_f16', 'v_writelane_b32') or self.dpp:
                    self.r |= R[0]
                if base == 'v_cndmask_b32' and len(R) == 3:
                    self.r |= {('vcc', 0)}
        elif mn.startswith('ds_'):
            self.kind = 'ds'
            if mn.startswith('ds_read') or mn.startswith('ds_bpermute') or mn.startswith('ds_permute') or mn.startswith('ds_swizzle') or '_rtn' in mn:
                self.w = R[0]; self.r = set().union(*R[1:])
            else:
                self.r = set().union(*R)
        elif mn.startswith('buffer_') or mn.startswith('global_'):
            self.kind = 'vmem'
            allmods = ' ' + mods + ' '
            self.lds = ' lds ' in allmods or '_lds_' in mn
            if mn.startswith('buffer_inv') or mn.startswith('buffer_wbl2'):
                pass
            elif 'load' in mn and not self.lds:
                self.w = R[0]; self.r = set().union(*R[1:])
            elif 'atomic' in mn and ' sc0 ' in allmods and mn.startswith('buffer_'):
                self.w = R[0]; self.r = set().union(*R)
            else:
                self.r = set().union(*R)
            if self.lds: self.r |= {('m0', 0)}
            self.wide_store = ('store' in mn) and (mn.endswith('x4') or mn.endswith('x3'))
            if self.wide_store:
                self.sdata = R[0] if mn.startswith('buffer_') else R[1]
        elif mn.startswith('s_'):
            self.kind = 'salu'
            if mn.startswith('s_cmp') or mn.startswith('s_cbranch') or mn in ('s_branch', 's_waitcnt', 's_barrier', 's_endpgm', 's_sleep', 's_setprio', 's_sethalt'):
                self.r = set().union(*R) if R else set()
            elif 'saveexec' in mn:
                self.w = R[0] | {('exec', 0)}; self.r = R[1] | {('exec', 0)}
            else:
                self.w = R[0]; self.r = set().union(*R[1:]) if len(R) > 1 else set()

def vg(S):
    return {x for x in S if x[0] in 'va'}
def sg(S):
    return {x for x in S if x[0] in ('s', 'vcc')}

def need(p, c):
    n = 0
    if p.kind == 'valu':
        pv = vg(p.w); ps = sg(p.w)
        if c.kind == 'mfma' and pv & c.r: n = max(n, 2)
        if c.kind == 'valu':
            if c.dpp and pv & c.r: n = max(n, 2)
            if c.base.startswith('v_permlane') and pv & c.r: n = max(n, 2)
            if c.base in ('v_readlane_b32', 'v_readfirstlane_b32') and pv & c.r: n = max(n, 1)
            if p.base in TRANS and (pv & (c.r | c.w)): n = max(n, 1)
            if ps & c.r: n = max(n, 4 if c.base in ('v_readlane_b32', 'v_writelane_b32', 'v_div_fmas_f32') else 2)
            if 'sdwa' in p.mn or 'op_sel' in p.mods:
                if pv & (c.r | c.w): n = max(n, 1)
        if p.base in TRANS and c.kind in ('mfma', 'ds', 'vmem') and pv & c.r: n = max(n, 2)
        if c.kind == 'vmem' and ps & c.r: n = max(n, 5)
        if c.kind == 'salu' and ps & c.r: n = max(n, 2)
        if ('exec', 0) in p.w:
            if c.kind == 'mfma': n = max(n, 4)
            if c.kind == 'valu' and (c.dpp): n = max(n, 5)
            if c.kind == 'valu' and (c.base.startswith('v_permlane') or c.base.startswith('v_read') or c.base.startswith('v_writelane')): n = max(n, 4)
            if c.kind == 'valu' and ('exec', 0) in c.r: n = max(n, 5)
    if p.kind == 'mfma':
        big = 12 if p.passes == 8 else 8
        if c.kind == 'mfma':
            if p.w & (c.srcA | c.srcB): n = max(n, big)
            if p.w & c.srcC:
                if not (p.w == c.srcC and p.passes == c.passes): n = max(n, 10 if p.passes == 8 else 6)
            elif p.w & c.w:
                n = max(n, big)
        elif c.kind in ('valu', 'ds', 'vmem'):
            if p.w & (c.r | c.w): n = max(n, big)
        if c.kind == 'valu' and (vg(p.srcC) & c.w): n = max(n, 7 if p.passes == 8 else 3)
        if c.kind in ('ds', 'vmem') and (vg(p.srcC) & c.w): n = max(n, 7 if p.passes == 8 else 3)
    if p.kind == 'vmem' and getattr(p, 'wide_store', False):
        if c.kind in ('valu', 'mfma') and p.sdata & c.w: n = max(n, 2)
        if c.kind in ('ds', 'vmem') and p.sdata & c.w: n = max(n, 1)
    if p.kind == 'salu':
        if ('m0', 0) in p.w and ('m0', 0) in c.r: n = max(n, 1)
        if ('exec', 0) in p.w and c.kind == 'valu' and c.dpp: n = max(n, 2)
    return n

def fix_hazards(lines):
    out = []
    for ln in lines:
        c = Ins(ln)
        if c.is_label or c.is_dir:
            if c.is_label and not (ln.endswith('_kernel:') or ln.startswith('LN_')):
                out.append(Ins('s_nop 7')); out.append(Ins('s_nop 7'))
            out.append(c); continue
        dist = 0; pad = 0
        for p in reversed(out):
            if p.is_label or p.is_dir: continue
            n = need(p, c)
            if n > dist: pad = max(pad, n - dist)
            dist += p.ws
            if dist >= 20: break
        while pad > 0:
            k = min(pad, 16)
            out.append(Ins(f's_nop {k-1}')); pad -= k
        out.append(c)
    return [i.text for i in out]

class Asm:
    def __init__(self):
        self.lines = []
    def __call__(self, s):
        for l in s.strip('\n').split('\n'):
            l = l.strip()
            if l: self.lines.append(l)
    def text(self):
        res = []
        for l in fix_hazards(self.lines):
            if l.endswith(':') or l.startswith('.'):
                res.append(l)
            else:
                res.append('    ' + l)
        return '\n'.join(res) + '\n'

def vr(b, n=1):
    return f'v{b}' if n == 1 else f'v[{b}:{b+n-1}]'
def sr(b, n=1):
    return f's{b}' if n == 1 else f's[{b}:{b+n-1}]'
def ar(b, n=1):
    return f'a{b}' if n == 1 else f'a[{b}:{b+n-1}]'
```

```python
import sys
from asmlib import Asm, vr, sr, ar

XN  = 0x000000
WF  = 0x200000
MOD = 0x300000
TF  = 0x400000
VF  = 0x600000
PF  = 0x800000
ML  = 0xC00000
WS_SIZE = 0x1000000
CST = 384 ** -0.5 * 1.4426950408889634

import struct
def f2u(f): return struct.unpack('<I', struct.pack('<f', f))[0]

HEADER = """; Kernarg layout for this problem (64 bytes, ptrs only, base s[0:1]):
"""

def srd(a, d, ptr, size):
    a(f"""s_mov_b32 s{d}, s{ptr}
    s_and_b32 s{d+1}, s{ptr+1}, 0xffff
    s_mov_b32 s{d+2}, {size}
    s_mov_b32 s{d+3}, 0x00020000""")

def kernel_head(a, name):
    a(f""".globl {name}
    .p2align 8
    .type {name},@function
    {name}:""")

def desc(name, vgpr, sgpr=96, accum=None):
    accum = accum or ((vgpr + 3) // 4 * 4)
    return f""".amdhsa_kernel {name}
  .amdhsa_next_free_vgpr {vgpr}
  .amdhsa_next_free_sgpr {sgpr}
  .amdhsa_accum_offset {min(accum,256)}
  .amdhsa_group_segment_fixed_size 0
  .amdhsa_kernarg_size 64
  .amdhsa_user_sgpr_count 2
  .amdhsa_user_sgpr_kernarg_segment_ptr 1
  .amdhsa_system_sgpr_workgroup_id_x 1
.end_amdhsa_kernel
"""

def common_prologue(a, nwg, tag):
    a(f"""s_cmp_ge_u32 s2, {nwg}
    s_cbranch_scc1 LN_{tag}_exit
    s_load_dwordx16 s[4:19], s[0:1], 0
    v_and_b32 v1, 63, v0
    v_lshrrev_b32 v2, 6, v0
    s_nop 0
    v_readfirstlane_b32 s3, v2
    s_waitcnt lgkmcnt(0)""")
    srd(a, 20, 18, WS_SIZE)

def bf16r(a, dst, src):
    a(f"""v_cvt_pk_bf16_f32 v{dst}, v{src}, v{src}
    v_lshlrev_b32 v{dst}, 16, v{dst}""")

N_MOD, N_FOLD, N_LN = 36, 288, 128
def gen_prep(a):
    kernel_head(a, 'prep_kernel')
    common_prologue(a, N_MOD + N_FOLD + N_LN, 'prep')
    a(f"""s_cmp_ge_u32 s2, {N_MOD}
    s_cbranch_scc1 LN_prep_notmod""")
    srd(a, 24, 6, 1536)
    srd(a, 28, 12, 384 * 4608)
    a(f"""v_lshlrev_b32 v2, 3, v0
    buffer_load_dwordx2 v[4:5], v2, s[24:27], 0 offen
    v_and_b32 v6, 3, v1                 ; cc
    v_lshrrev_b32 v7, 2, v1             ; rg
    v_mul_u32_u24 v7, 6, v7
    s_mul_i32 s32, s3, 96
    v_add_u32 v7, s32, v7
    v_mul_u32_u24 v3, 4608, v7
    v_lshl_add_u32 v3, v6, 4, v3
    s_lshl_b32 s33, s2, 6
    v_add_u32 v3, s33, v3""")
    for i in range(6):
        a(f"s_mov_b32 s{34+i}, {4608*i}")
    for i in range(6):
        a(f"buffer_load_dwordx4 {vr(8+4*i,4)}, v3, s[28:31], s{34+i} offen")
    a("s_waitcnt vmcnt(6)")
    a("""v_lshlrev_b32 v40, 16, v4
    v_and_b32 v41, 0xffff0000, v4
    v_lshlrev_b32 v42, 16, v5
    v_and_b32 v43, 0xffff0000, v5""")
    for i in range(4):
        a(f"v_mul_f32 v{44+i}, 0xbfb8aa3b, v{40+i}")
    for i in range(4):
        a(f"v_exp_f32 v{44+i}, v{44+i}")
    for i in range(4):
        a(f"v_add_f32 v{44+i}, 1.0, v{44+i}")
    for i in range(4):
        a(f"v_rcp_f32 v{44+i}, v{44+i}")
    for i in range(4):
        a(f"v_mul_f32 v{40+i}, v{40+i}, v{44+i}")
    for i in range(4):
        bf16r(a, 40+i, 40+i)
    a("""v_lshlrev_b32 v2, 4, v0
    ds_write_b128 v2, v[40:43]
    v_lshlrev_b32 v2, 2, v7
    s_waitcnt lgkmcnt(0)
    s_barrier""")
    for b in range(2):
        for m in range(3):
            a(f"ds_read_b64 {vr(40+6*b+2*m,2)}, v2 offset:{1536*b+8*m}")
    a("s_waitcnt vmcnt(0) lgkmcnt(0)")
    for i in range(6):
        for dwi in range(4):
            a(f"v_lshlrev_b32 v{52+2*dwi}, 16, v{8+4*i+dwi}")
            a(f"v_and_b32 v{53+2*dwi}, 0xffff0000, v{8+4*i+dwi}")
        for b in range(2):
            scp = 40 + 6*b + (i // 2) * 2
            sel = "op_sel:[0,0,0] op_sel_hi:[1,0,1]" if i % 2 == 0 else "op_sel:[0,1,0] op_sel_hi:[1,1,1]"
            sel2 = "op_sel:[0,0] op_sel_hi:[1,0]" if i % 2 == 0 else "op_sel:[0,1] op_sel_hi:[1,1]"
            for p in range(4):
                acc = vr(64 + 8*b + 2*p, 2)
                if i == 0:
                    a(f"v_pk_mul_f32 {acc}, {vr(52+2*p,2)}, {vr(scp,2)} {sel2}")
                else:
                    a(f"v_pk_fma_f32 {acc}, {vr(52+2*p,2)}, {vr(scp,2)}, {acc} {sel}")
    for ror in (4, 8):
        for i in range(16):
            a(f"v_add_f32_dpp v{64+i}, v{64+i}, v{64+i} row_ror:{ror} row_mask:0xf bank_mask:0xf")
    a("""v_lshrrev_b32 v2, 4, v0
    v_lshlrev_b32 v2, 8, v2
    v_lshl_add_u32 v2, v6, 5, v2
    s_mov_b32 s40, 0x000f000f
    s_mov_b32 s41, 0x000f000f
    s_mov_b64 exec, s[40:41]""")
    for b in range(2):
        for hf in range(2):
            a(f"ds_write_b128 v2, {vr(64+8*b+4*hf,4)} offset:{4096+128*b+16*hf}")
    a("""s_mov_b64 exec, -1
    s_waitcnt lgkmcnt(0)
    s_barrier
    s_cmp_lg_u32 s3, 0
    s_cbranch_scc1 LN_prep_exit
    v_lshlrev_b32 v2, 2, v1""")
    for p in range(16):
        a(f"ds_read_b32 v{8+p}, v2 offset:{4096+256*p}")
    a("s_waitcnt lgkmcnt(0)")
    for st in (8, 4, 2, 1):
        for i in range(st):
            a(f"v_add_f32 v{8+i}, v{8+i}, v{8+i+st}")
    bf16r(a, 8, 8)
    a(f"""s_mul_i32 s42, s2, 43691
    s_lshr_b32 s42, s42, 19             ; sec
    s_mul_i32 s43, s42, 12
    s_sub_u32 s43, s2, s43
    s_lshl_b32 s43, s43, 5              ; dbase
    v_and_b32 v2, 31, v1
    v_add_u32 v2, s43, v2               ; d
    v_lshrrev_b32 v3, 5, v1             ; b
    ; p = (d & ~0x1c) | ((d&0xc)<<1) | ((d&0x10)>>2)
    v_and_b32 v4, 0xffffffe3, v2
    v_and_b32 v5, 0xc, v2
    v_lshl_or_b32 v4, v5, 1, v4
    v_and_b32 v5, 0x10, v2
    v_lshrrev_b32 v5, 2, v5
    v_or_b32 v4, v4, v5                 ; p
    v_lshrrev_b32 v5, 3, v4             ; chunk
    v_and_b32 v6, 7, v4                 ; e
    v_mul_u32_u24 v7, 48, v3
    v_add_u32 v5, v5, v7
    v_lshlrev_b32 v5, 6, v5
    v_lshl_add_u32 v5, v6, 2, v5
    v_mul_u32_u24 v7, 384, v3
    v_add_u32 v7, v7, v2
    v_lshlrev_b32 v7, 2, v7
    s_mov_b32 s44, {MOD}
    s_cmp_eq_u32 s42, 1
    s_cbranch_scc1 LN_prep_scale
    s_cmp_eq_u32 s42, 2
    s_cbranch_scc1 LN_prep_gate
    buffer_store_dword v8, v5, s[20:23], s44 offen offset:32
    s_endpgm
    LN_prep_scale:
    v_add_f32 v8, 1.0, v8""")
    bf16r(a, 8, 8)
    a(f"""v_mul_f32 v9, {f2u(CST):#x}, v8
    s_mov_b32 s45, {MOD+8192}
    buffer_store_dword v8, v5, s[20:23], s44 offen
    buffer_store_dword v9, v7, s[20:23], s45 offen
    s_endpgm
    LN_prep_gate:
    s_mov_b32 s45, {MOD+12288}
    buffer_store_dword v8, v7, s[20:23], s45 offen
    s_endpgm""")
    a(f"""LN_prep_notmod:
    s_cmp_ge_u32 s2, {N_MOD+N_FOLD}
    s_cbranch_scc1 LN_prep_ln
    s_sub_u32 s32, s2, {N_MOD}           ; fw
    s_cmp_ge_u32 s32, 144
    s_cselect_b32 s33, 1, 0              ; mat
    s_mul_i32 s34, s33, 144
    s_sub_u32 s32, s32, s34              ; tile
    s_mul_i32 s34, s32, 43691
    s_lshr_b32 s34, s34, 19              ; it
    s_mul_i32 s35, s34, 12
    s_sub_u32 s35, s32, s35              ; nt""")
    srd(a, 24, 8, 384 * 2304)
    srd(a, 28, 10, 384 * 768)
    a(f"""v_lshrrev_b32 v2, 5, v1              ; h
    v_and_b32 v3, 31, v1                 ; r32
    s_mul_i32 s36, s3, 192               ; 96*wave*2
    v_lshl_add_u32 v4, v2, 4, s36
    s_lshl_b32 s37, s34, 5
    v_add_u32 v5, s37, v3
    v_mul_u32_u24 v5, 2304, v5
    v_add_u32 v5, v5, v4
    s_mul_i32 s38, s33, 1536""")
    for ks in range(6):
        a(f"buffer_load_dwordx4 {vr(16+4*ks,4)}, v5, s[24:27], s38 offen offset:{32*ks}")
    a(f"""s_cmp_eq_u32 s33, 1
    s_cbranch_scc1 LN_prep_fold_vo
    s_lshl_b32 s37, s35, 5
    v_add_u32 v6, s37, v3
    v_mul_u32_u24 v6, 2304, v6
    v_add_u32 v6, v6, v4""")
    for ks in range(6):
        a(f"buffer_load_dwordx4 {vr(40+4*ks,4)}, v6, s[24:27], 0 offen offset:{768+32*ks}")
    a(f"""s_waitcnt vmcnt(0)
    s_branch LN_prep_fold_mm
    LN_prep_fold_vo:
    v_lshrrev_b32 v6, 2, v1
    s_mul_i32 s37, s3, 96
    v_add_u32 v6, s37, v6
    v_mul_u32_u24 v6, 768, v6
    v_and_b32 v7, 3, v1
    v_lshl_add_u32 v6, v7, 4, v6
    s_lshl_b32 s37, s35, 6
    v_add_u32 v6, s37, v6
    s_mul_i32 s39, s3, 6144""")
    for s in range(6):
        a(f"""s_add_u32 m0, s39, {1024*s}
        s_mov_b32 s40, {12288*s}
        buffer_load_dwordx4 v6, s[28:31], s40 offen lds""")
    a(f"""v_bfe_u32 v8, v1, 2, 2              ; r
    v_lshl_add_u32 v8, v2, 3, v8
    v_lshlrev_b32 v8, 6, v8
    v_bfe_u32 v9, v1, 4, 1              ; nh
    v_lshl_add_u32 v8, v9, 5, v8
    v_lshl_add_u32 v8, v7, 3, v8
    v_add_u32 v8, s39, v8
    s_waitcnt vmcnt(0)""")
    for ks in range(6):
        for j in range(2):
            a(f"ds_read_b64_tr_b16 {vr(40+4*ks+2*j,2)}, v8 offset:{1024*ks+256*j}")
    a("""s_waitcnt lgkmcnt(0)
    LN_prep_fold_mm:""")
    for ks in range(6):
        c = "0" if ks == 0 else "v[64:79]"
        a(f"v_mfma_f32_32x32x16_bf16 v[64:79], {vr(16+4*ks,4)}, {vr(40+4*ks,4)}, {c}")
    a(f"""v_lshlrev_b32 v8, 4, v1
    s_lshl_b32 s39, s3, 12
    v_add_u32 v9, s39, v8""")
    for q in range(4):
        a(f"ds_write_b128 v9, {vr(64+4*q,4)} offset:{24576+1024*q}")
    a(f"""s_lshl_b32 s39, s3, 10
    v_add_u32 v9, s39, v8
    s_waitcnt lgkmcnt(0)
    s_barrier""")
    for w in range(4):
        a(f"ds_read_b128 {vr(16+4*w,4)}, v9 offset:{24576+4096*w}")
    a(f"""s_mul_i32 s39, s33, 24
    s_lshl_b32 s40, s35, 1
    s_add_u32 s39, s39, s40
    v_lshrrev_b32 v10, 4, v3
    v_add_u32 v10, s39, v10              ; NT
    v_mul_u32_u24 v10, 12, v10
    v_add_u32 v10, s34, v10
    v_lshlrev_b32 v10, 10, v10
    s_and_b32 s39, s3, 1
    s_lshl_b32 s39, s39, 1
    v_add_u32 v11, s39, v2               ; g
    v_lshl_add_u32 v10, v11, 8, v10
    v_and_b32 v11, 15, v1
    v_lshl_add_u32 v10, v11, 4, v10
    s_lshr_b32 s39, s3, 1
    s_lshl_b32 s39, s39, 3
    s_add_u32 s39, s39, {WF}
    s_waitcnt lgkmcnt(0)
    v_pk_add_f32 v[16:17], v[16:17], v[20:21]
    v_pk_add_f32 v[18:19], v[18:19], v[22:23]
    v_pk_add_f32 v[24:25], v[24:25], v[28:29]
    v_pk_add_f32 v[26:27], v[26:27], v[30:31]
    v_pk_add_f32 v[16:17], v[16:17], v[24:25]
    v_pk_add_f32 v[18:19], v[18:19], v[26:27]
    v_cvt_pk_bf16_f32 v16, v16, v17
    v_cvt_pk_bf16_f32 v17, v18, v19
    buffer_store_dwordx2 v[16:17], v10, s[20:23], s39 offen
    s_endpgm""")
    a(f"""LN_prep_ln:
    s_sub_u32 s32, s2, {N_MOD+N_FOLD}    ; lw""")
    srd(a, 24, 4, 2048 * 768)
    a(f"""v_lshrrev_b32 v2, 4, v0
    s_lshl_b32 s33, s32, 4
    v_add_u32 v2, s33, v2                ; row
    v_and_b32 v3, 15, v1                 ; i
    v_mul_u32_u24 v4, 768, v2
    v_lshrrev_b32 v5, 2, v3
    v_lshl_add_u32 v4, v5, 6, v4
    v_and_b32 v5, 3, v3
    v_lshl_add_u32 v4, v5, 3, v4""")
    for n in range(3):
        for t in range(2):
            a(f"buffer_load_dwordx2 {vr(8+4*n+2*t,2)}, v4, s[24:27], 0 offen offset:{256*n+32*t}")
    a(f"""v_lshrrev_b32 v5, 5, v2              ; rt32
    v_mul_u32_u24 v5, 24576, v5
    v_lshrrev_b32 v6, 1, v3
    v_lshl_add_u32 v5, v6, 10, v5
    v_and_b32 v6, 1, v3
    v_lshl_add_u32 v5, v6, 9, v5
    v_and_b32 v6, 31, v2
    v_lshl_add_u32 v5, v6, 4, v5
    s_mov_b32 s34, {XN}
    s_mov_b32 s35, {XN+8192}
    s_mov_b32 s36, {XN+16384}
    s_waitcnt vmcnt(0)""")
    for i in range(12):
        a(f"v_lshlrev_b32 v{24+2*i}, 16, v{8+i}")
        a(f"v_and_b32 v{25+2*i}, 0xffff0000, v{8+i}")
    for i in range(6):
        a(f"v_pk_add_f32 {vr(48+2*i,2)}, {vr(24+4*i,2)}, {vr(26+4*i,2)}")
    for i in range(3):
        a(f"v_pk_add_f32 {vr(48+2*i,2)}, {vr(48+2*i,2)}, {vr(54+2*i,2)}")
    a("""v_pk_add_f32 v[48:49], v[48:49], v[50:51]
    v_pk_add_f32 v[48:49], v[48:49], v[52:53]
    v_add_f32 v48, v48, v49""")
    for ror in (8, 4, 2, 1):
        a(f"v_add_f32_dpp v48, v48, v48 row_ror:{ror} row_mask:0xf bank_mask:0xf")
    a(f"v_mul_f32 v48, {f2u(1/384):#x}, v48     ; mean f32")
    bf16r(a, 49, 48)
    for i in range(12):
        a(f"v_pk_add_f32 v[52:53], {vr(24+2*i,2)}, v[48:49] op_sel_hi:[1,0] neg_lo:[0,1] neg_hi:[0,1]")
        if i == 0:
            a("v_pk_mul_f32 v[50:51], v[52:53], v[52:53]")
        else:
            a("v_pk_fma_f32 v[50:51], v[52:53], v[52:53], v[50:51]")
    a("v_add_f32 v50, v50, v51")
    for ror in (8, 4, 2, 1):
        a(f"v_add_f32_dpp v50, v50, v50 row_ror:{ror} row_mask:0xf bank_mask:0xf")
    a(f"v_mul_f32 v50, {f2u(1/384):#x}, v50")
    bf16r(a, 50, 50)
    a(f"v_add_f32 v50, {f2u(1e-5):#x}, v50")
    bf16r(a, 50, 50)
    a("v_sqrt_f32 v50, v50")
    bf16r(a, 50, 50)
    a("v_rcp_f32 v50, v50")
    for i in range(12):
        a(f"""v_pk_add_f32 v[52:53], {vr(24+2*i,2)}, v[48:49] op_sel:[0,1] op_sel_hi:[1,1] neg_lo:[0,1] neg_hi:[0,1]
        v_cvt_pk_bf16_f32 v54, v52, v53
        v_lshlrev_b32 v52, 16, v54
        v_and_b32 v53, 0xffff0000, v54
        v_pk_mul_f32 v[52:53], v[52:53], v[50:51] op_sel_hi:[1,0]
        v_cvt_pk_bf16_f32 v{8+i}, v52, v53""")
        if i % 4 == 3:
            n = i // 4
            a(f"buffer_store_dwordx4 {vr(8+4*n,4)}, v5, s[20:23], s{34+n} offen")
    a("""LN_prep_exit:
    s_endpgm""")

def wg_decode(a):
    a("""s_and_b32 s28, s2, 7
    s_lshr_b32 s24, s28, 2               ; b
    s_and_b32 s28, s28, 3
    s_lshl_b32 s28, s28, 2
    s_lshr_b32 s29, s2, 3
    s_and_b32 s29, s29, 3
    s_add_u32 s25, s28, s29              ; qin
    s_lshr_b32 s26, s2, 5                ; j
    s_lshl_b32 s27, s24, 4
    s_add_u32 s27, s27, s25              ; qt""")

def dma_block(a, nkb, s_glob, s_lds, voff, stmp, flags=""):
    for i in range(nkb):
        if i % 4 == 0:
            a(f"s_add_u32 m0, s{s_lds}, {1024*i}")
            a(f"s_add_u32 s{stmp}, s{s_glob}, {1024*i}")
        a(f"buffer_load_dwordx4 v{voff}, s[20:23], s{stmp} offen offset:{1024*(i%4)} {flags} lds")

G_W, G_H, G_GS = 0, 73728, 122880
G_LDS = 126976
def gen_g(a):
    kernel_head(a, 'gemm_kernel')
    common_prologue(a, 256, 'g')
    wg_decode(a)
    a(f"""v_lshlrev_b32 v2, 4, v1              ; lane*16
    s_mul_i32 s30, s24, 48
    s_mul_i32 s31, s3, 12
    s_add_u32 s30, s30, s31
    s_lshl_b32 s30, s30, 6
    s_add_u32 s30, s30, {MOD}
    s_lshl_b32 s31, s3, 10
    s_add_u32 s31, s31, {G_GS}
    s_mov_b32 m0, s31
    s_nop 0
    buffer_load_dwordx4 v2, s[20:23], s30 offen lds
    ; xn loads: voff = (cq/2)*1024 + (cq%2)*512 + r16*16
    v_lshrrev_b32 v3, 4, v1              ; cq
    v_and_b32 v4, 15, v1                 ; r16
    v_lshrrev_b32 v5, 1, v3
    v_lshlrev_b32 v5, 10, v5
    v_and_b32 v6, 1, v3
    v_lshl_add_u32 v5, v6, 9, v5
    v_lshl_add_u32 v5, v4, 4, v5
    s_mul_i32 s32, s27, 49152
    s_mul_i32 s33, s3, 6144
    s_add_u32 s32, s32, s33
    s_add_u32 s32, s32, {XN}""")
    for m in range(3):
        for v in range(4):
            off = (v // 2) * 24576 + 2 * m * 1024 + (v % 2) * 256
            a(f"s_add_u32 s33, s32, {off}")
            a(f"buffer_load_dwordx4 {vr(16+4*(m*4+v),4)}, v5, s[20:23], s33 offen")
    a(f"""s_and_b32 s34, s3, 1                 ; rh
    s_lshr_b32 s35, s3, 1                ; ch
    s_and_b32 s36, s26, 3
    s_mul_i32 s36, s36, 96
    s_mul_i32 s37, s35, 48
    s_add_u32 s36, s36, s37
    s_mul_i32 s37, s24, 384
    s_add_u32 s36, s36, s37
    s_lshl_b32 s36, s36, 2
    s_add_u32 s36, s36, {MOD+8192}
    v_lshlrev_b32 v6, 4, v3              ; g4*16""")
    for dt in range(3):
        a(f"buffer_load_dwordx4 {vr(112+4*dt,4)}, v6, s[20:23], s36 offen offset:{64*dt}")
    a(f"""s_mul_i32 s38, s26, 73728
    s_mul_i32 s39, s3, 18432
    s_add_u32 s38, s38, s39
    s_add_u32 s38, s38, {WF}
    s_add_u32 s39, s39, {G_W}""")
    dma_block(a, 18, 38, 39, 2, 40)
    a(f"""v_lshlrev_b32 v7, 6, v3
    v_add_u32 v7, s31, v7
    s_waitcnt vmcnt(33)""")
    for m in range(3):
        for q in range(4):
            a(f"ds_read_b128 {vr(64+16*m+4*q,4)}, v7 offset:{256*m+16*q}")
    a(f"""s_mul_i32 s33, s3, 3072
    s_add_u32 s33, s33, {G_H}
    v_add_u32 v8, s33, v2
    s_waitcnt lgkmcnt(0)""")
    for m in range(3):
        for v in range(4):
            it = m * 4 + v
            a(f"s_waitcnt vmcnt({21 + 11 - it})")
            X = 16 + 4 * it
            for d in range(4):
                a(f"""v_lshlrev_b32 v10, 16, v{X+d}
                v_and_b32 v11, 0xffff0000, v{X+d}
                v_pk_fma_f32 v[10:11], v[10:11], {vr(64+16*m+2*d,2)}, {vr(64+16*m+8+2*d,2)}
                v_cvt_pk_bf16_f32 v{X+d}, v10, v11""")
            a(f"ds_write_b128 v8, {vr(X,4)} offset:{(v*12+m)*1024}")
    a(f"""s_waitcnt vmcnt(0) lgkmcnt(0)
    s_barrier
    s_mul_i32 s33, s34, 24576
    s_add_u32 s33, s33, {G_H}
    v_add_u32 v8, s33, v2
    s_mul_i32 s33, s35, 36864
    s_add_u32 s33, s33, {G_W}
    v_add_u32 v9, s33, v2
    s_cmp_ge_u32 s26, 4
    s_cbranch_scc1 LN_g_v""")
    def mm(is_v):
        def rd(ks, bsel):
            base = 16 + 20 * bsel
            for rt in range(2):
                a(f"ds_read_b128 {vr(base+4*rt,4)}, v8 offset:{(rt*12+ks)*1024}")
            for nt in range(3):
                a(f"ds_read_b128 {vr(base+8+4*nt,4)}, v9 offset:{(nt*12+ks)*1024}")
        rd(0, 0)
        for ks in range(12):
            bsel = ks % 2
            if ks + 1 < 12:
                rd(ks + 1, 1 - bsel)
                a("s_waitcnt lgkmcnt(5)")
            else:
                a("s_waitcnt lgkmcnt(0)")
            base = 16 + 20 * bsel
            for nt in range(3):
                for rt in range(2):
                    acc = vr(64 + 8 * nt + 4 * rt, 4)
                    c = "0" if ks == 0 else acc
                    H = vr(base + 4 * rt, 4); W = vr(base + 8 + 4 * nt, 4)
                    if is_v:
                        a(f"v_mfma_f32_16x16x32_bf16 {acc}, {H}, {W}, {c}")
                    else:
                        a(f"v_mfma_f32_16x16x32_bf16 {acc}, {W}, {H}, {c}")
    mm(False)
    a(f"""v_lshrrev_b32 v10, 1, v3
    v_lshlrev_b32 v10, 10, v10
    v_and_b32 v11, 1, v3
    v_lshl_add_u32 v10, v11, 9, v10
    v_lshl_add_u32 v10, v4, 4, v10
    s_lshl_b32 s33, s27, 1
    s_add_u32 s33, s33, s34
    s_mul_i32 s33, s33, 24576
    s_add_u32 s33, s33, {TF}
    s_mul_i32 s40, s26, 6
    s_mul_i32 s41, s35, 3
    s_add_u32 s40, s40, s41              ; DT0""")
    for dt in range(3):
        a(f"""s_add_u32 s41, s40, {dt}
        s_lshr_b32 s42, s41, 1
        s_lshl_b32 s42, s42, 11
        s_and_b32 s41, s41, 1
        s_lshl_b32 s41, s41, 3
        s_add_u32 s42, s42, s41
        s_add_u32 s42, s42, s33""")
        for rt in range(2):
            acc = 64 + 8 * dt + 4 * rt
            a(f"""v_pk_mul_f32 {vr(acc,2)}, {vr(acc,2)}, {vr(112+4*dt,2)}
            v_pk_mul_f32 {vr(acc+2,2)}, {vr(acc+2,2)}, {vr(114+4*dt,2)}
            v_cvt_pk_bf16_f32 v{acc}, v{acc}, v{acc+1}
            v_cvt_pk_bf16_f32 v{acc+1}, v{acc+2}, v{acc+3}
            buffer_store_dwordx2 {vr(acc,2)}, v10, s[20:23], s42 offen offset:{256*rt}""")
    a("""s_endpgm
    LN_g_v:""")
    mm(True)
    a(f"""s_sub_u32 s40, s26, 4
    s_mul_i32 s40, s40, 6
    s_mul_i32 s41, s35, 3
    s_add_u32 s40, s40, s41
    s_mul_i32 s41, s24, 24
    s_add_u32 s40, s40, s41
    s_lshl_b32 s40, s40, 5
    s_lshl_b32 s41, s25, 1
    s_add_u32 s40, s40, s41
    s_add_u32 s40, s40, s34
    s_lshl_b32 s40, s40, 10
    s_add_u32 s40, s40, {VF}""")
    for dt in range(3):
        acc = 64 + 8 * dt
        a(f"""v_cvt_pk_bf16_f32 v{acc}, v{acc}, v{acc+1}
        v_cvt_pk_bf16_f32 v{acc+1}, v{acc+2}, v{acc+3}
        v_cvt_pk_bf16_f32 v{acc+2}, v{acc+4}, v{acc+5}
        v_cvt_pk_bf16_f32 v{acc+3}, v{acc+6}, v{acc+7}
        s_add_u32 s41, s40, {32768*dt}
        buffer_store_dwordx4 {vr(acc,4)}, v2, s[20:23], s41 offen""")
    a("""LN_g_exit:
    s_endpgm""")

S_T, S_X = 0, 49152
S_LDS = 49152 + 2048
def gen_s(a):
    kernel_head(a, 'score_kernel')
    common_prologue(a, 256, 's')
    wg_decode(a)
    a(f"""v_lshlrev_b32 v2, 4, v1
    s_mul_i32 s30, s27, 49152
    s_mul_i32 s31, s3, 12288
    s_add_u32 s30, s30, s31
    s_add_u32 s30, s30, {TF}
    s_add_u32 s31, s31, {S_T}""")
    dma_block(a, 12, 30, 31, 2, 32)
    a(f"""s_lshl_b32 s33, s24, 5
    s_lshl_b32 s34, s26, 2
    s_add_u32 s33, s33, s34
    s_add_u32 s33, s33, s3
    s_mul_i32 s33, s33, 24576
    s_add_u32 s33, s33, {XN}""")
    for ks in range(24):
        if ks % 4 == 0:
            a(f"s_add_u32 s34, s33, {1024*ks}")
        a(f"buffer_load_dwordx4 {vr(64+4*ks,4)}, v2, s[20:23], s34 offen offset:{1024*(ks%4)}")
    a("""s_waitcnt vmcnt(24)
    s_barrier""")
    def rd(ks, bsel):
        for T in range(2):
            a(f"ds_read_b128 {vr(48+8*bsel+4*T,4)}, v2 offset:{S_T+(T*24+ks)*1024}")
    rd(0, 0)
    for ks in range(24):
        bsel = ks % 2
        if ks + 1 < 24:
            rd(ks + 1, 1 - bsel)
            a(f"s_waitcnt vmcnt({23-ks}) lgkmcnt(2)")
        else:
            a("s_waitcnt vmcnt(0) lgkmcnt(0)")
        for T in range(2):
            acc = vr(16 + 16 * T, 16)
            c = "0" if ks == 0 else acc
            a(f"v_mfma_f32_32x32x16_bf16 {acc}, {vr(64+4*ks,4)}, {vr(48+8*bsel+4*T,4)}, {c}")
    for T in range(2):
        A = 16 + 16 * T
        m = 64 + T
        a(f"v_max3_f32 v{m}, v{A}, v{A+1}, v{A+2}")
        for i in range(3, 15, 2):
            a(f"v_max3_f32 v{m}, v{m}, v{A+i}, v{A+i+1}")
        a(f"v_max_f32 v{m}, v{m}, v{A+15}")
    for T in range(2):
        m = 64 + T
        a(f"""v_mov_b32 v{68+T}, v{m}
        v_permlane32_swap_b32 v{68+T}, v{m}
        v_max_f32 v{m}, v{m}, v{68+T}""")
    for T in range(2):
        A = 16 + 16 * T
        for i in range(16):
            a(f"v_sub_f32 v{A+i}, v{A+i}, v{64+T}")
        for i in range(16):
            a(f"v_exp_f32 v{A+i}, v{A+i}")
        for i in range(4):
            a(f"v_pk_add_f32 {vr(72+2*i,2)}, {vr(A+4*i,2)}, {vr(A+4*i+2,2)}")
        a(f"""v_pk_add_f32 v[72:73], v[72:73], v[74:75]
        v_pk_add_f32 v[76:77], v[76:77], v[78:79]
        v_pk_add_f32 v[72:73], v[72:73], v[76:77]
        v_add_f32 v{66+T}, v72, v73""")
    for T in range(2):
        l = 66 + T
        a(f"""v_mov_b32 v{68+T}, v{l}
        v_permlane32_swap_b32 v{68+T}, v{l}
        v_add_f32 v{l}, v{l}, v{68+T}""")
    a(f"""v_cmp_gt_u32 vcc, 32, v1
    v_cndmask_b32 v70, v65, v64, vcc
    v_cndmask_b32 v71, v67, v66, vcc
    v_lshlrev_b32 v3, 3, v1
    s_lshl_b32 s35, s3, 9
    v_add_u32 v4, s35, v3
    ds_write_b64 v4, v[70:71] offset:{S_X}
    v_and_b32 v5, 31, v1
    v_lshlrev_b32 v5, 3, v5
    s_waitcnt lgkmcnt(0)
    s_barrier""")
    for T in range(2):
        for w in range(4):
            a(f"ds_read_b64 {vr(72+8*T+2*w,2)}, v5 offset:{S_X+512*w+256*T}")
    a("s_waitcnt lgkmcnt(0)")
    for T in range(2):
        B = 72 + 8 * T
        M = 88 + T; L = 90 + T; F = 92 + T
        a(f"""v_max3_f32 v{M}, v{B}, v{B+2}, v{B+4}
        v_max_f32 v{M}, v{M}, v{B+6}""")
        for w in range(4):
            a(f"v_sub_f32 v{B+2*w}, v{B+2*w}, v{M}")
        a(f"v_sub_f32 v{F}, v{64+T}, v{M}")
        for w in range(4):
            a(f"v_exp_f32 v{B+2*w}, v{B+2*w}")
        a(f"v_exp_f32 v{F}, v{F}")
        a(f"v_mul_f32 v{L}, v{B}, v{B+1}")
        for w in range(1, 4):
            a(f"v_fmac_f32 v{L}, v{B+2*w}, v{B+2*w+1}")
    a(f"""s_lshl_b32 s35, s24, 6
    s_lshl_b32 s36, s25, 2
    s_add_u32 s35, s35, s36              ; b*64 + qin*4
    s_lshl_b32 s35, s35, 5
    s_lshl_b32 s36, s26, 2
    s_add_u32 s35, s35, s36
    s_add_u32 s35, s35, s3               ; + kstep
    s_lshl_b32 s35, s35, 10
    s_add_u32 s35, s35, {PF}
    v_bfe_u32 v6, v1, 4, 1               ; (l%32)/16
    v_lshlrev_b32 v6, 15, v6
    v_lshrrev_b32 v7, 5, v1              ; h
    v_lshl_add_u32 v6, v7, 8, v6
    v_and_b32 v7, 15, v1
    v_lshl_add_u32 v6, v7, 4, v6""")
    for T in range(2):
        A = 16 + 16 * T; F = 92 + T
        for i in range(8):
            a(f"v_pk_mul_f32 {vr(A+2*i,2)}, {vr(A+2*i,2)}, {vr(92,2)} op_sel:[0,{T}] op_sel_hi:[1,{T}]")
        for cs in range(2):
            D = 96 + 8 * T + 4 * cs
            a(f"""v_cvt_pk_bf16_f32 v{D}, v{A+4*cs}, v{A+4*cs+1}
            v_cvt_pk_bf16_f32 v{D+1}, v{A+4*cs+2}, v{A+4*cs+3}
            v_cvt_pk_bf16_f32 v{D+2}, v{A+8+4*cs}, v{A+8+4*cs+1}
            v_cvt_pk_bf16_f32 v{D+3}, v{A+8+4*cs+2}, v{A+8+4*cs+3}
            s_add_u32 s36, s35, {65536*T}
            buffer_store_dwordx4 {vr(D,4)}, v6, s[20:23], s36 offen offset:{512*cs}""")
    a(f"""s_cmp_lg_u32 s3, 0
    s_cbranch_scc1 LN_s_exit
    v_cndmask_b32 v70, v89, v88, vcc
    v_cndmask_b32 v71, v91, v90, vcc
    v_lshlrev_b32 v3, 6, v1
    s_lshl_b32 s36, s27, 12
    s_lshl_b32 s37, s26, 3
    s_add_u32 s36, s36, s37
    s_add_u32 s36, s36, {ML}
    buffer_store_dwordx2 v[70:71], v3, s[20:23], s36 offen
    LN_s_exit:
    s_endpgm""")

P_V, P_R = 0, 98304
P_LDS = 98304 + 12288
def gen_pv(a):
    kernel_head(a, 'pv_kernel')
    common_prologue(a, 256, 'pv')
    wg_decode(a)
    srd(a, 44, 4, 2048 * 768)
    srd(a, 48, 14, 2048 * 768)
    a(f"""v_lshlrev_b32 v2, 4, v1
    s_mul_i32 s30, s24, 24
    s_mul_i32 s31, s26, 3
    s_add_u32 s30, s30, s31
    s_lshl_b32 s30, s30, 15
    s_mul_i32 s31, s3, 24576
    s_add_u32 s30, s30, s31
    s_add_u32 s30, s30, {VF}
    s_add_u32 s31, s31, {P_V}""")
    dma_block(a, 24, 30, 31, 2, 32)
    a(f"""s_and_b32 s34, s3, 1                 ; qh
    s_lshr_b32 s35, s3, 1                ; kh
    v_and_b32 v3, 15, v1                 ; q16
    v_lshrrev_b32 v4, 4, v1              ; g4
    v_lshlrev_b32 v5, 6, v3
    s_lshl_b32 s36, s27, 12
    s_lshl_b32 s37, s34, 11
    s_add_u32 s36, s36, s37
    s_add_u32 s36, s36, {ML}""")
    for T in range(2):
        for i in range(4):
            a(f"buffer_load_dwordx4 {vr(16+16*T+4*i,4)}, v5, s[20:23], s36 offen offset:{1024*T+16*i}")
    a(f"""s_lshl_b32 s36, s27, 6
    s_lshl_b32 s37, s34, 5
    s_add_u32 s36, s36, s37
    s_lshl_b32 s37, s35, 4
    s_add_u32 s36, s36, s37
    v_add_u32 v6, s36, v3
    v_mul_u32_u24 v6, 768, v6
    v_lshl_add_u32 v6, v4, 3, v6
    s_mul_i32 s38, s26, 96
    v_lshlrev_b32 v7, 4, v4
    s_mul_i32 s39, s24, 1536
    s_mul_i32 s40, s26, 192
    s_add_u32 s39, s39, s40
    s_add_u32 s39, s39, {MOD+12288}""")
    for dt in range(3):
        a(f"buffer_load_dwordx2 {vr(48+2*dt,2)}, v6, s[44:47], s38 offen offset:{32*dt}")
    for dt in range(3):
        a(f"buffer_load_dwordx4 {vr(56+4*dt,4)}, v7, s[20:23], s39 offen offset:{64*dt}")
    a(f"""s_lshl_b32 s40, s24, 6
    s_lshl_b32 s41, s25, 2
    s_add_u32 s40, s40, s41
    s_lshl_b32 s41, s34, 1
    s_add_u32 s40, s40, s41
    s_lshl_b32 s40, s40, 5
    s_lshl_b32 s41, s35, 4
    s_add_u32 s40, s40, s41
    s_lshl_b32 s40, s40, 10
    s_add_u32 s40, s40, {PF}""")
    for ks in range(16):
        for T in range(2):
            if ks % 4 == 0:
                a(f"s_add_u32 s{41+T}, s40, {32768*T+1024*ks}")
            a(f"buffer_load_dwordx4 {ar((ks*2+T)*4,4)}, v2, s[20:23], s{41+T} offen offset:{1024*(ks%4)}")
    a("s_waitcnt vmcnt(38)")
    AL = 72
    for T in range(2):
        B = 16 + 16 * T
        M = 68
        a(f"""v_max3_f32 v{M}, v{B}, v{B+2}, v{B+4}
        v_max3_f32 v{M}, v{M}, v{B+6}, v{B+8}
        v_max3_f32 v{M}, v{M}, v{B+10}, v{B+12}
        v_max_f32 v{M}, v{M}, v{B+14}""")
        for jj in range(8):
            a(f"v_sub_f32 v{B+2*jj}, v{B+2*jj}, v{M}")
        for jj in range(8):
            a(f"v_exp_f32 v{B+2*jj}, v{B+2*jj}")
        a(f"v_mul_f32 v69, v{B}, v{B+1}")
        for jj in range(1, 8):
            a(f"v_fmac_f32 v69, v{B+2*jj}, v{B+2*jj+1}")
        a("v_rcp_f32 v69, v69")
        a("s_cmp_eq_u32 s35, 0")
        a("s_cselect_b64 vcc, -1, 0")
        for i in range(4):
            a(f"v_cndmask_b32 v{AL+4*T+i}, v{B+8+2*i}, v{B+2*i}, vcc")
        for i in range(4):
            a(f"v_mul_f32 v{AL+4*T+i}, v{AL+4*T+i}, v69")
    a(f"""s_barrier
    s_lshl_b32 s43, s35, 14
    s_add_u32 s43, s43, {P_V}
    v_add_u32 v8, s43, v2""")
    def rd(ks, bsel):
        for dt in range(3):
            a(f"ds_read_b128 {vr(16+12*bsel+4*dt,4)}, v8 offset:{(dt*32+ks)*1024}" if (dt*32+ks)*1024 < 65536 else
              f"ds_read_b128 {vr(16+12*bsel+4*dt,4)}, v9 offset:{(dt*32+ks)*1024-65536}")
    a("v_add_u32 v9, 0x10000, v8")
    rd(0, 0)
    for ks in range(16):
        bsel = ks % 2
        if ks + 1 < 16:
            rd(ks + 1, 1 - bsel)
            a(f"s_waitcnt vmcnt({30-2*ks}) lgkmcnt(3)")
        else:
            a("s_waitcnt vmcnt(0) lgkmcnt(0)")
        sp = ks // 4
        for dt in range(3):
            for T in range(2):
                acc = vr(80 + 24 * sp + (dt * 2 + T) * 4, 4)
                c = "0" if ks % 4 == 0 else acc
                a(f"v_mfma_f32_16x16x32_bf16 {acc}, {vr(16+12*bsel+4*dt,4)}, {ar((ks*2+T)*4,4)}, {c}")
    for sp in range(4):
        for dt in range(3):
            for T in range(2):
                for hf in range(2):
                    o = vr(176 + (dt * 2 + T) * 4 + 2 * hf, 2)
                    acc = vr(80 + 24 * sp + (dt * 2 + T) * 4 + 2 * hf, 2)
                    alp = AL + 4 * T + (sp // 2) * 2
                    e = sp % 2
                    if sp == 0:
                        a(f"v_pk_mul_f32 {o}, {acc}, {vr(alp,2)} op_sel:[0,{e}] op_sel_hi:[1,{e}]")
                    else:
                        a(f"v_pk_fma_f32 {o}, {acc}, {vr(alp,2)}, {o} op_sel:[0,{e},0] op_sel_hi:[1,{e},1]")
    for dt in range(3):
        for i in range(4):
            o0 = 176 + (dt * 2) * 4 + i; o1 = o0 + 4
            a(f"v_cndmask_b32 v{16+4*dt+i}, v{o0}, v{o1}, vcc")
            a(f"v_cndmask_b32 v{28+4*dt+i}, v{o1}, v{o0}, vcc")
    a(f"""s_mul_i32 s43, s3, 3072
    s_add_u32 s43, s43, {P_R}
    v_add_u32 v8, s43, v2
    s_xor_b32 s43, s3, 2
    s_mul_i32 s43, s43, 3072
    s_add_u32 s43, s43, {P_R}
    v_add_u32 v9, s43, v2""")
    for dt in range(3):
        a(f"ds_write_b128 v8, {vr(16+4*dt,4)} offset:{1024*dt}")
    a("""s_waitcnt lgkmcnt(0)
    s_barrier""")
    for dt in range(3):
        a(f"ds_read_b128 {vr(16+4*dt,4)}, v9 offset:{1024*dt}")
    a("s_waitcnt lgkmcnt(0)")
    for dt in range(3):
        for hf in range(2):
            k = 28 + 4 * dt + 2 * hf
            a(f"""v_pk_add_f32 {vr(k,2)}, {vr(k,2)}, {vr(16+4*dt+2*hf,2)}
            v_cvt_pk_bf16_f32 v40, v{k}, v{k+1}
            v_lshlrev_b32 v{k}, 16, v40
            v_and_b32 v{k+1}, 0xffff0000, v40
            v_pk_mul_f32 {vr(k,2)}, {vr(k,2)}, {vr(56+4*dt+2*hf,2)}
            v_cvt_pk_bf16_f32 v40, v{k}, v{k+1}
            v_lshlrev_b32 v{k}, 16, v40
            v_and_b32 v{k+1}, 0xffff0000, v40
            v_lshlrev_b32 v42, 16, v{48+2*dt+hf}
            v_and_b32 v43, 0xffff0000, v{48+2*dt+hf}
            v_pk_add_f32 {vr(k,2)}, {vr(k,2)}, v[42:43]
            v_cvt_pk_bf16_f32 v{48+2*dt+hf}, v{k}, v{k+1}""")
        a(f"buffer_store_dwordx2 {vr(48+2*dt,2)}, v6, s[48:51], s38 offen offset:{32*dt}")
    a("""LN_pv_exit:
    s_endpgm""")

def main(out):
    a = Asm()
    a('.amdgcn_target "amdgcn-amd-amdhsa--gfx950"')
    a('.text')
    gen_prep(a); gen_g(a); gen_s(a); gen_pv(a)
    txt = HEADER
    txt += f"; @launch kernel=prep_kernel grid=({N_MOD+N_FOLD+N_LN},1,1) block=(256,1,1) lds=40960\n"
    txt += f"; @launch kernel=gemm_kernel grid=(256,1,1) block=(256,1,1) lds={G_LDS}\n"
    txt += f"; @launch kernel=score_kernel grid=(256,1,1) block=(256,1,1) lds={S_LDS}\n"
    txt += f"; @launch kernel=pv_kernel grid=(256,1,1) block=(256,1,1) lds={P_LDS}\n"
    txt += a.text()
    txt += '.section .rodata,"a"\n.p2align 6\n'
    txt += desc('prep_kernel', 80) + '.p2align 6\n' + desc('gemm_kernel', 124) + '.p2align 6\n' + desc('score_kernel', 160) + '.p2align 6\n' + desc('pv_kernel', 200 + 128, accum=200)
    open(out, 'w').write(txt)

if __name__ == '__main__':
    main(sys.argv[1] if len(sys.argv) > 1 else 'standalone__dit_adaln_block__diffusion.s')
```

```python
import sys, struct
from asmlib import Asm, vr, sr, ar

XN  = 0x000000
WF  = 0x200000
MOD = 0x300000
TF  = 0x400000
VF  = 0x600000
ML  = 0x780000
FL  = 0x7A0000
OP  = 0x800000
DBGW = 0x1400000
WS_SIZE = 0x1800000
CST = 384 ** -0.5 * 1.4426950408889634
KNAME = 'standalone__dit_adaln_block__diffusion_kernel'

L_W, L_H, L_GS = 0, 73728, 122880
L_TOT = 135168
L_P0B, L_P0R, L_P0C = 0, 36864, 61440
L_T, L_P, L_X = 0, 0, 49152

STAMP = False
SC1 = "sc1"
LSC = "sc1"
def f2u(f): return struct.unpack('<I', struct.pack('<f', f))[0]

HEADER = """; Kernarg layout for this problem (64 bytes, ptrs only, base s[0:1]):
"""

def srd(a, d, ptr, size):
    a(f"""s_mov_b32 s{d}, s{ptr}
    s_and_b32 s{d+1}, s{ptr+1}, 0xffff
    s_mov_b32 s{d+2}, {size}
    s_mov_b32 s{d+3}, 0x00020000""")

def stamp(a, idx):
    if STAMP:
        a(f"""s_memrealtime s[{70+2*(idx%2)}:{71+2*(idx%2)}]
        s_waitcnt lgkmcnt(0)
        v_writelane_b32 v255, s{70+2*(idx%2)}, {idx}""")
def stamp_flush(a):
    if STAMP:
        a(f"""s_lshl_b32 s70, s2, 2
        s_add_u32 s70, s70, s3
        s_lshl_b32 s70, s70, 8
        s_add_u32 s70, s70, {DBGW}
        v_lshlrev_b32 v254, 2, v1
        buffer_store_dword v255, v254, s[20:23], s70 offen""")

def bf16r(a, dst, src):
    a(f"""v_cvt_pk_bf16_f32 v{dst}, v{src}, v{src}
    v_lshlrev_b32 v{dst}, 16, v{dst}""")

def dma_block(a, nkb, s_glob, s_lds, voff, stmp, flags=""):
    for i in range(nkb):
        if i % 4 == 0:
            a(f"s_add_u32 m0, s{s_lds}, {1024*i}")
            a(f"s_add_u32 s{stmp}, s{s_glob}, {1024*i}")
        a(f"buffer_load_dwordx4 v{voff}, s[20:23], s{stmp} offen offset:{1024*(i%4)} {flags} lds")

def signal(a, tag, vaddr, smask, dbgbyte=False):
    a(f"""s_waitcnt vmcnt(0) lgkmcnt(0)
    s_barrier
    s_cmp_lg_u32 s3, 0
    s_cbranch_scc1 LN_{tag}_skip""")
    if dbgbyte:
        a(f"""v_readfirstlane_b32 s67, v3
        s_mul_i32 s67, s67, 0x9E3779B1
        s_add_u32 s67, s67, 0x7F4A7C15""")
    a(f"""v_mov_b32 v5, s67
    s_mov_b64 exec, {smask}
    buffer_store_dword v5, v{vaddr}, s[20:23], 0 offen sc1""")
    if dbgbyte:
        a(f"""v_mov_b32 v4, s28
        v_mov_b32 v5, 1
        s_mov_b64 exec, 1
        buffer_store_byte v5, v4, s[52:55], 0 offen sc1""")
    a(f"""s_mov_b64 exec, -1
    LN_{tag}_skip:""")

def wait_flags(a, tag, vaddr, smask):
    a(f"""s_cmp_lg_u32 s3, 0
    s_cbranch_scc1 LN_{tag}_done
    s_mov_b32 s68, 0x100000
    s_mov_b64 exec, {smask}
    LN_{tag}_loop:
    buffer_load_dword v5, v{vaddr}, s[20:23], 0 offen sc1
    s_sub_u32 s68, s68, 1
    s_cmp_eq_u32 s68, 0
    s_cbranch_scc1 LN_{tag}_out
    s_waitcnt vmcnt(0)
    v_cmp_ne_u32 vcc, s67, v5
    s_nop 4
    s_cbranch_vccnz LN_{tag}_loop
    LN_{tag}_out:
    s_mov_b64 exec, -1
    LN_{tag}_done:
    s_barrier""")

def gen(a):
    a(f""".globl {KNAME}
    .p2align 8
    .type {KNAME},@function
    {KNAME}:""")
    if STAMP: a("s_memrealtime s[72:73]")
    a(f"""s_cmp_ge_u32 s2, 256
    s_cbranch_scc1 LN_exit
    s_load_dwordx16 s[4:19], s[0:1], 0
    s_getpc_b64 s[30:31]
    LN_pc:
    v_and_b32 v1, 63, v0
    v_lshrrev_b32 v2, 6, v0
    s_lshr_b32 s32, s2, 3
    v_readfirstlane_b32 s3, v2
    v_lshlrev_b32 v2, 4, v1              ; lane*16
    s_lshl_b32 s32, s32, 2
    s_add_u32 s32, s32, s3
    s_and_b32 s32, s32, 31
    s_lshl_b32 s32, s32, 10
    s_min_u32 s32, s32, LN_codeend-LN_pc-1024
    s_add_u32 s30, s30, s32
    s_addc_u32 s31, s31, 0
    global_load_dword v4, v2, s[30:31]
    ; decode
    s_and_b32 s29, s2, 7
    s_lshr_b32 s24, s29, 2               ; b
    s_and_b32 s29, s29, 3
    s_lshl_b32 s29, s29, 2
    s_lshr_b32 s30, s2, 3
    s_and_b32 s30, s30, 3
    s_add_u32 s25, s29, s30              ; qin
    s_lshr_b32 s26, s2, 5                ; j
    s_lshl_b32 s27, s24, 4
    s_add_u32 s27, s27, s25              ; qt
    s_lshl_b32 s28, s27, 3
    s_add_u32 s28, s28, s26              ; lid
    v_and_b32 v6, 15, v1                 ; i / r16 / n16
    v_lshrrev_b32 v7, 4, v1              ; r4 / g
    v_mul_u32_u24 v8, 768, v7
    v_lshl_add_u32 v8, v6, 4, v8""")
    for s in range(9):
        a(f"""v_add_u32 v9, {64*s}, v1
        v_mul_u32_u24 v{100+s}, 43691, v9
        v_lshrrev_b32 v{100+s}, 18, v{100+s}
        v_mul_u32_u24 v10, 6, v{100+s}
        v_sub_u32 v9, v9, v10
        v_lshlrev_b32 v{110+s}, 4, v9""")
    a("s_waitcnt lgkmcnt(0)")
    srd(a, 20, 18, WS_SIZE)
    srd(a, 44, 4, 2048 * 768)
    srd(a, 48, 14, 2048 * 768)
    srd(a, 52, 16, 256)
    a(f"""v_mov_b32 v5, {FL}
    buffer_load_dword v3, v5, s[20:23], 0 offen sc1
    ; default sync0 signal: lane0 -> class (b, qin/2), slot 48 + (qin%2)*8 + j
    s_lshl_b32 s29, s24, 3
    s_lshr_b32 s30, s25, 1
    s_add_u32 s29, s29, s30
    s_lshl_b32 s29, s29, 8
    s_and_b32 s30, s25, 1
    s_lshl_b32 s30, s30, 3
    s_add_u32 s30, s30, s26
    s_add_u32 s30, s30, 48
    s_lshl_b32 s30, s30, 2
    s_add_u32 s29, s29, s30
    s_add_u32 s69, s29, {FL+0x1000}
    v_mov_b32 v14, s69
    s_mov_b64 s[74:75], 1""")
    if STAMP:
        a("""v_mov_b32 v255, 0
        v_writelane_b32 v255, s72, 0""")
        stamp(a, 1)
    for p in range(4):
        a(f"""s_lshl_b32 s{36+p}, s26, 1
        s_add_u32 s{36+p}, s{36+p}, s3
        s_add_u32 s{36+p}, s{36+p}, {4*p}
        s_and_b32 s{36+p}, s{36+p}, 15
        s_lshl_b32 s29, s27, 4
        s_add_u32 s29, s29, s{36+p}
        s_mul_i32 s{40+p}, s29, 3072""")
    def xloads(p):
        for n in range(3):
            a(f"buffer_load_dwordx4 {vr(16+12*p+4*n,4)}, v8, s[44:47], s{40+p} offen offset:{256*n}")
    xloads(0)
    a(f"""s_lshr_b32 s78, s2, 3                ; t
    s_and_b32 s79, s2, 7
    s_mov_b32 s33, 3
    s_cmp_ge_u32 s78, 27
    s_cbranch_scc1 LN_p0_none
    s_mul_i32 s29, s3, 9216
    s_cmp_ge_u32 s78, 24
    s_cbranch_scc1 LN_p0_mod
    ; ---- fold: mat s33 = x/4, it s34 = 6*((x/2)%2) + t/4, n48 s35 = 4*(x%2) + t%4
    s_lshr_b32 s33, s79, 2
    s_bfe_u32 s34, s79, 0x10001
    s_mul_i32 s34, s34, 6
    s_lshr_b32 s30, s78, 2
    s_add_u32 s34, s34, s30
    s_and_b32 s35, s79, 1
    s_lshl_b32 s35, s35, 2
    s_and_b32 s30, s78, 3
    s_add_u32 s35, s35, s30""")
    srd(a, 56, 8, 384 * 2304)
    a(f"""s_lshl_b32 s30, s33, 2
    s_lshr_b32 s31, s35, 1
    s_add_u32 s30, s30, s31              ; jw
    s_lshl_b32 s30, s30, 8
    s_lshl_b32 s31, s34, 1
    s_and_b32 s32, s35, 1
    s_add_u32 s31, s31, s32
    s_lshl_b32 s31, s31, 2
    s_add_u32 s30, s30, s31
    s_add_u32 s30, s30, {FL+0x1000-2048}
    v_lshlrev_b32 v14, 11, v1
    v_add_u32 v14, s30, v14
    v_writelane_b32 v14, s69, 0
    s_mov_b64 s[74:75], 7""")
    a(f"""s_lshl_b32 s30, s34, 5
    v_add_u32 v9, s30, v6
    v_mul_u32_u24 v9, 2304, v9
    v_lshl_add_u32 v9, v7, 4, v9
    s_mul_i32 s31, s3, 192
    v_add_u32 v9, s31, v9
    s_mul_i32 s30, s33, 1536
    s_add_u32 s32, s30, 36864""")
    for mt in range(2):
        for ks in range(3):
            a(f"buffer_load_dwordx4 {vr(120+(mt*3+ks)*4,4)}, v9, s[56:59], s{30 if mt==0 else 32} offen offset:{64*ks}")
    a(f"""s_cmp_eq_u32 s33, 1
    s_cbranch_scc1 LN_p0_vo
    s_mul_i32 s30, s35, 48
    v_add_u32 v9, s30, v6
    v_mul_u32_u24 v9, 2304, v9
    v_lshl_add_u32 v9, v7, 4, v9
    v_add_u32 v9, s31, v9""")
    for nt in range(3):
        a(f"s_mov_b32 s30, {768+36864*nt}")
        for ks in range(3):
            a(f"buffer_load_dwordx4 {vr(144+(nt*3+ks)*4,4)}, v9, s[56:59], s30 offen offset:{64*ks}")
    a("""s_branch LN_p0_none
    LN_p0_vo:""")
    srd(a, 60, 10, 384 * 768)
    a(f"""s_mul_i32 s30, s3, {96*768}
    s_mul_i32 s31, s35, 96
    s_add_u32 s30, s30, s31""")
    for s in range(9):
        a(f"""v_mul_u32_u24 v9, 768, v{100+s}
        v_add_u32 v9, v9, v{110+s}
        s_add_u32 m0, s29, {L_P0B+1024*s}
        buffer_load_dwordx4 v9, s[60:63], s30 offen lds""")
    a("s_branch LN_p0_none")
    a("LN_p0_mod:")
    srd(a, 56, 6, 1536)
    srd(a, 60, 12, 384 * 4608)
    a(f"""s_sub_u32 s35, s78, 24
    s_lshl_b32 s35, s35, 3
    s_add_u32 s35, s35, s79
    s_lshl_b32 s30, s35, 2
    s_add_u32 s30, s30, {FL+0x1000+96-256}
    v_lshlrev_b32 v14, 8, v1
    v_add_u32 v14, s30, v14
    v_writelane_b32 v14, s69, 0
    s_mov_b64 s[74:75], 0x1ffff
    s_mov_b32 s33, 2
    v_lshlrev_b32 v9, 2, v1
    s_mul_i32 s30, s3, 192
    s_add_u32 s31, s30, 768
    buffer_load_dword v12, v9, s[56:59], s30 offen
    buffer_load_dword v13, v9, s[56:59], s31 offen
    s_mul_i32 s30, s3, {96*4608}
    s_mul_i32 s31, s35, 96
    s_add_u32 s30, s30, s31""")
    for s in range(9):
        a(f"""v_mul_u32_u24 v9, 4608, v{100+s}
        v_add_u32 v9, v9, v{110+s}
        s_add_u32 m0, s29, {L_P0B+1024*s}
        buffer_load_dwordx4 v9, s[60:63], s30 offen lds""")
    def ln_pass(p):
        X = 16 + 12 * p
        for i in range(12):
            a(f"v_lshlrev_b32 v{64+2*i}, 16, v{X+i}")
            a(f"v_and_b32 v{65+2*i}, 0xffff0000, v{X+i}")
        for i in range(6):
            a(f"v_pk_add_f32 {vr(88+2*i,2)}, {vr(64+4*i,2)}, {vr(66+4*i,2)}")
        for i in range(3):
            a(f"v_pk_add_f32 {vr(88+2*i,2)}, {vr(88+2*i,2)}, {vr(94+2*i,2)}")
        a("""v_pk_add_f32 v[88:89], v[88:89], v[90:91]
        v_pk_add_f32 v[88:89], v[88:89], v[92:93]
        v_add_f32 v88, v88, v89""")
        for ror in (8, 4, 2, 1):
            a(f"v_add_f32_dpp v88, v88, v88 row_ror:{ror} row_mask:0xf bank_mask:0xf")
        a(f"v_mul_f32 v88, {f2u(1/384):#x}, v88")
        bf16r(a, 89, 88)
        for i in range(12):
            a(f"v_pk_add_f32 {vr(64+2*i,2)}, {vr(64+2*i,2)}, v[88:89] op_sel:[0,1] op_sel_hi:[1,1] neg_lo:[0,1] neg_hi:[0,1]")
        a("""v_pk_mul_f32 v[90:91], v[64:65], v[64:65]
        v_pk_mul_f32 v[92:93], v[66:67], v[66:67]""")
        for i in range(2, 12):
            acc = 90 + 2 * (i % 2)
            a(f"v_pk_fma_f32 {vr(acc,2)}, {vr(64+2*i,2)}, {vr(64+2*i,2)}, {vr(acc,2)}")
        a("""v_pk_add_f32 v[90:91], v[90:91], v[92:93]
        v_sub_f32 v88, v88, v89
        v_add_f32 v90, v90, v91""")
        for ror in (8, 4, 2, 1):
            a(f"v_add_f32_dpp v90, v90, v90 row_ror:{ror} row_mask:0xf bank_mask:0xf")
        a(f"""v_mul_f32 v90, {f2u(1/384):#x}, v90
        v_fma_f32 v90, -v88, v88, v90
        v_max_f32 v90, 0, v90""")
        bf16r(a, 90, 90)
        a(f"v_add_f32 v90, {f2u(1e-5):#x}, v90")
        bf16r(a, 90, 90)
        a("v_sqrt_f32 v90, v90")
        bf16r(a, 90, 90)
        a("v_rcp_f32 v90, v90")
        for i in range(12):
            a(f"v_pk_mul_f32 {vr(64+2*i,2)}, {vr(64+2*i,2)}, v[90:91] op_sel_hi:[1,0]")
        for i in range(12):
            a(f"v_cvt_pk_bf16_f32 v{X+i}, v{64+2*i}, v{65+2*i}")
    a("""LN_p0_none:""")
    for p in range(1, 4): xloads(p)
    a("""s_cmp_eq_u32 s33, 3
    s_cbranch_scc1 LN_w9
    s_cmp_eq_u32 s33, 2
    s_cbranch_scc1 LN_w20
    s_waitcnt vmcnt(24)
    s_branch LN_wd
    LN_w20:
    s_waitcnt vmcnt(20)
    s_branch LN_wd
    LN_w9:
    s_waitcnt vmcnt(9)
    LN_wd:""")
    stamp(a, 2)
    STORE_NOTE = None
    ln_pass(0)
    a(f"""s_cmp_ge_u32 s3, 2
    s_cbranch_scc1 LN_nopub
    v_lshrrev_b32 v9, 1, v6
    v_lshlrev_b32 v9, 10, v9
    v_and_b32 v10, 1, v6
    v_lshl_add_u32 v9, v10, 9, v9
    v_lshl_add_u32 v9, v7, 4, v9
    s_lshr_b32 s29, s36, 3               ; gi/8
    s_lshl_b32 s30, s27, 1
    s_add_u32 s29, s29, s30
    s_mul_i32 s29, s29, 24576
    s_and_b32 s30, s36, 7
    s_lshl_b32 s30, s30, 6
    s_add_u32 s29, s29, s30
    s_add_u32 s29, s29, {XN}""")
    for n in range(3):
        a(f"""s_add_u32 s30, s29, {8192*n}
        buffer_store_dwordx4 {vr(16+4*n,4)}, v9, s[20:23], s30 offen {SC1}""")
    a("LN_nopub:")
    stamp(a, 3)
    a("""s_cmp_eq_u32 s33, 3
    s_cbranch_scc1 LN_p0_ln
    s_mul_i32 s29, s3, 9216
    s_cmp_eq_u32 s33, 0
    s_cbranch_scc0 LN_p0_notqk
    s_waitcnt vmcnt(9)
    s_branch LN_p0_mm
    LN_p0_notqk:
    s_cmp_eq_u32 s33, 1
    s_cbranch_scc1 LN_p0_tr""")
    for i in range(24):
        a(f"v_mov_b32 v{120+i}, 0")
    a("""s_waitcnt vmcnt(18)
    v_lshlrev_b32 v64, 16, v12
    v_and_b32 v65, 0xffff0000, v12
    v_lshlrev_b32 v66, 16, v13
    v_and_b32 v67, 0xffff0000, v13""")
    for i in range(4): a(f"v_mul_f32 v{68+i}, 0xbfb8aa3b, v{64+i}")
    for i in range(4): a(f"v_exp_f32 v{68+i}, v{68+i}")
    for i in range(4): a(f"v_add_f32 v{68+i}, 1.0, v{68+i}")
    for i in range(4): a(f"v_rcp_f32 v{68+i}, v{68+i}")
    for i in range(4): a(f"v_mul_f32 v{64+i}, v{64+i}, v{68+i}")
    a(f"""v_cvt_pk_bf16_f32 v12, v64, v65
    v_cvt_pk_bf16_f32 v13, v66, v67
    s_lshl_b32 s30, s3, 9
    s_add_u32 s30, s30, {L_P0C}
    v_lshl_add_u32 v9, v1, 2, s30
    ds_write_b32 v9, v12
    ds_write_b32 v9, v13 offset:256
    v_lshlrev_b32 v9, 8, v6
    v_lshl_add_u32 v9, v7, 4, v9
    v_add_u32 v9, s30, v9
    s_mov_b32 s30, 0x00030003
    s_mov_b32 s31, 0x00030003
    s_waitcnt lgkmcnt(0)
    s_mov_b64 exec, s[30:31]""")
    for ks in range(3):
        a(f"ds_read_b128 {vr(120+ks*4,4)}, v9 offset:{64*ks}")
    a("""s_mov_b64 exec, -1
    LN_p0_tr:
    ; tr-read address: region + (8g + r)*96 + 8c  (r = (l%16)/4, c = l%4)
    v_lshrrev_b32 v9, 2, v6
    v_lshl_add_u32 v9, v7, 3, v9
    v_mul_u32_u24 v9, 96, v9
    v_and_b32 v10, 3, v6
    v_lshl_add_u32 v9, v10, 3, v9
    v_add_u32 v9, s29, v9
    s_waitcnt vmcnt(9)""")
    for nt in range(3):
        for ks in range(3):
            for jj in range(2):
                a(f"ds_read_b64_tr_b16 {vr(144+(nt*3+ks)*4+2*jj,2)}, v9 offset:{L_P0B+(32*ks+4*jj)*96+32*nt}")
    a("""s_waitcnt lgkmcnt(0)
    LN_p0_mm:""")
    for ks in range(3):
        for nt in range(3):
            for mt in range(2):
                acc = vr(180 + (nt * 2 + mt) * 4, 4)
                c = "0" if ks == 0 else acc
                a(f"v_mfma_f32_16x16x32_bf16 {acc}, {vr(120+(mt*3+ks)*4,4)}, {vr(144+(nt*3+ks)*4,4)}, {c}")
    a(f"""s_mul_i32 s30, s3, 6144
    v_add_u32 v9, s30, v2""")
    for t in range(6):
        a(f"ds_write_b128 v9, {vr(180+4*t,4)} offset:{L_P0R+1024*t}")
    a(f"""s_lshl_b32 s30, s3, 11
    v_add_u32 v9, s30, v2
    s_waitcnt lgkmcnt(0)
    s_barrier
    s_cmp_eq_u32 s3, 3
    s_cbranch_scc1 LN_p0_ln""")
    for w in range(4):
        for mt in range(2):
            a(f"ds_read_b128 {vr(120+(w*2+mt)*4,4)}, v9 offset:{L_P0R+6144*w+1024*mt}")
    a("s_waitcnt lgkmcnt(0)")
    for i in range(4):
        a(f"v_pk_add_f32 {vr(120+2*i,2)}, {vr(120+2*i,2)}, {vr(128+2*i,2)}")
        a(f"v_pk_add_f32 {vr(136+2*i,2)}, {vr(136+2*i,2)}, {vr(144+2*i,2)}")
    for i in range(4):
        a(f"v_pk_add_f32 {vr(120+2*i,2)}, {vr(120+2*i,2)}, {vr(136+2*i,2)}")
    a(f"""s_cmp_eq_u32 s33, 2
    s_cbranch_scc1 LN_p0_modfin
    v_cvt_pk_bf16_f32 v120, v120, v121
    v_cvt_pk_bf16_f32 v121, v122, v123
    v_cvt_pk_bf16_f32 v122, v124, v125
    v_cvt_pk_bf16_f32 v123, v126, v127
    s_mul_i32 s30, s33, 24
    s_mul_i32 s31, s35, 3
    s_add_u32 s30, s30, s31
    s_add_u32 s30, s30, s3
    s_mul_i32 s30, s30, 12
    s_add_u32 s30, s30, s34
    s_lshl_b32 s30, s30, 10
    s_add_u32 s30, s30, {WF}
    v_lshrrev_b32 v9, 1, v7
    v_lshlrev_b32 v9, 8, v9
    v_lshl_add_u32 v9, v6, 4, v9
    v_and_b32 v10, 1, v7
    v_lshl_add_u32 v9, v10, 3, v9
    buffer_store_dwordx2 v[120:121], v9, s[20:23], s30 offen {SC1}
    buffer_store_dwordx2 v[122:123], v9, s[20:23], s30 offen offset:512 {SC1}
    s_branch LN_p0_ln
    LN_p0_modfin:
    v_cvt_pk_bf16_f32 v122, v120, v121
    v_lshlrev_b32 v120, 16, v122
    v_and_b32 v121, 0xffff0000, v122
    s_lshr_b32 s30, s35, 3               ; sec
    s_and_b32 s31, s35, 7
    s_mul_i32 s31, s31, 48
    s_lshl_b32 s32, s3, 4
    s_add_u32 s31, s31, s32
    v_add_u32 v9, s31, v1                ; d
    v_lshrrev_b32 v11, 3, v9
    v_and_b32 v10, 7, v9
    v_lshlrev_b32 v11, 6, v11
    v_lshl_add_u32 v10, v10, 2, v11
    v_lshlrev_b32 v9, 2, v9
    s_mov_b32 s32, {MOD}
    s_mov_b64 exec, 0xffff
    s_cmp_eq_u32 s30, 1
    s_cbranch_scc1 LN_p0_scale
    s_cmp_eq_u32 s30, 2
    s_cbranch_scc1 LN_p0_gate
    buffer_store_dword v120, v10, s[20:23], s32 offen offset:32 {SC1}
    buffer_store_dword v121, v10, s[20:23], s32 offen offset:{3072+32} {SC1}
    s_branch LN_p0_modend
    LN_p0_scale:
    v_add_f32 v120, 1.0, v120
    v_add_f32 v121, 1.0, v121
    v_cvt_pk_bf16_f32 v122, v120, v121
    v_lshlrev_b32 v120, 16, v122
    v_and_b32 v121, 0xffff0000, v122
    v_mul_f32 v122, {f2u(CST):#x}, v120
    v_mul_f32 v123, {f2u(CST):#x}, v121
    s_mov_b32 s31, {MOD+8192}
    buffer_store_dword v120, v10, s[20:23], s32 offen {SC1}
    buffer_store_dword v121, v10, s[20:23], s32 offen offset:3072 {SC1}
    buffer_store_dword v122, v9, s[20:23], s31 offen {SC1}
    buffer_store_dword v123, v9, s[20:23], s31 offen offset:1536 {SC1}
    s_branch LN_p0_modend
    LN_p0_gate:
    s_mov_b32 s31, {MOD+12288}
    buffer_store_dword v120, v9, s[20:23], s31 offen {SC1}
    buffer_store_dword v121, v9, s[20:23], s31 offen offset:1536 {SC1}
    LN_p0_modend:
    s_mov_b64 exec, -1
    s_branch LN_p0_ln
    LN_p0_ln:""")
    stamp(a, 4)
    signal(a, "sig0", 14, "s[74:75]", dbgbyte=True)
    stamp(a, 5)
    for p in range(1, 4): ln_pass(p)
    stamp(a, 6)
    a(f"""s_lshl_b32 s29, s24, 3
    s_add_u32 s29, s29, s26
    s_lshl_b32 s29, s29, 8
    s_add_u32 s29, s29, {FL+0x1000}
    v_lshl_add_u32 v14, v1, 2, s29""")
    wait_flags(a, "w0", 14, "-1")
    stamp(a, 7)
    a(f"""s_mul_i32 s30, s24, 3072
    s_add_u32 s30, s30, {MOD}
    s_mul_i32 s31, s3, 3072
    s_add_u32 s31, s31, {L_GS}""")
    dma_block(a, 3, 30, 31, 2, 32, LSC)
    a(f"""s_mul_i32 s29, s26, 73728
    s_mul_i32 s30, s3, 18432
    s_add_u32 s29, s29, s30
    s_add_u32 s29, s29, {WF}
    s_add_u32 s30, s30, {L_W}""")
    dma_block(a, 18, 29, 30, 2, 32, LSC)
    a(f"""s_and_b32 s34, s3, 1                 ; rh
    s_lshr_b32 s35, s3, 1                ; ch
    s_and_b32 s29, s26, 3
    s_mul_i32 s29, s29, 96
    s_mul_i32 s30, s35, 48
    s_add_u32 s29, s29, s30
    s_mul_i32 s30, s24, 384
    s_add_u32 s29, s29, s30
    s_lshl_b32 s29, s29, 2
    s_add_u32 s29, s29, {MOD+8192}
    v_lshlrev_b32 v9, 4, v7""")
    for dt in range(3):
        a(f"buffer_load_dwordx4 {vr(112+4*dt,4)}, v9, s[20:23], s29 offen offset:{64*dt} {LSC}")
    a(f"""s_lshl_b32 s29, s24, 5
    s_lshl_b32 s30, s26, 2
    s_add_u32 s29, s29, s30
    s_add_u32 s29, s29, s3
    s_mul_i32 s29, s29, 24576
    s_add_u32 s29, s29, {XN}""")
    a("s_mov_b32 s76, s29")
    def xnk_load(ks):
        if ks % 4 == 0:
            a(f"s_add_u32 s77, s76, {1024*ks}")
        a(f"buffer_load_dwordx4 {ar(4*ks,4)}, v2, s[20:23], s77 offen offset:{1024*(ks%4)} {LSC}")
    a(f"""v_lshlrev_b32 v9, 6, v6
    v_add_u32 v9, s31, v9
    s_waitcnt vmcnt(21)""")
    for n in range(3):
        for q in range(4):
            a(f"ds_read_b128 {vr(64+16*n+4*q,4)}, v9 offset:{1024*n+16*q}")
    a(f"""v_lshrrev_b32 v9, 2, v6
    v_lshlrev_b32 v9, 10, v9
    v_and_b32 v10, 3, v6
    v_lshl_add_u32 v9, v10, 8, v9
    v_and_b32 v10, 7, v6
    v_xor_b32 v10, v10, v7
    v_lshl_add_u32 v9, v10, 4, v9
    s_waitcnt lgkmcnt(0)""")
    stamp(a, 8)
    for p in range(4):
        a(f"""s_and_b32 s29, s{36+p}, 3
        s_lshl_b32 s29, s29, 6
        s_lshr_b32 s30, s{36+p}, 2
        s_mul_i32 s30, s30, 12288
        s_add_u32 s30, s30, {L_H}
        v_xor_b32 v15, s29, v9
        v_add_u32 v15, s30, v15""")
        for n in range(3):
            X = 16 + 12 * p + 4 * n
            for d in range(4):
                t = 124 + 2 * (d % 2)
                a(f"""v_lshlrev_b32 v{t}, 16, v{X+d}
                v_and_b32 v{t+1}, 0xffff0000, v{X+d}
                v_pk_fma_f32 {vr(t,2)}, {vr(t,2)}, {vr(64+16*n+2*d,2)}, {vr(64+16*n+8+2*d,2)}
                v_cvt_pk_bf16_f32 v{X+d}, v{t}, v{t+1}""")
            a(f"ds_write_b128 v15, {vr(X,4)} offset:{4096*n}")
            xnk_load(2 * (3 * p + n)); xnk_load(2 * (3 * p + n) + 1)
    stamp(a, 9)
    a(f"""v_xor_b32 v9, v6, v7
    v_lshlrev_b32 v9, 4, v9
    v_lshl_add_u32 v9, v7, 8, v9
    s_mul_i32 s29, s34, 24576
    s_add_u32 s29, s29, {L_H}
    v_add_u32 v8, s29, v9
    v_xor_b32 v9, 64, v8
    s_mul_i32 s29, s35, 36864
    s_add_u32 s29, s29, {L_W}
    v_add_u32 v10, s29, v2
    s_waitcnt vmcnt(27) lgkmcnt(0)
    s_barrier""")
    stamp(a, 10)
    a("""s_cmp_ge_u32 s26, 4
    s_cbranch_scc1 LN_g_v""")
    def mm(is_v):
        def rd(ks, bsel):
            base = 16 + 20 * bsel
            for rt in range(2):
                a(f"ds_read_b128 {vr(base+4*rt,4)}, v{8+(ks%2)} offset:{(rt*12+ks)*1024}")
            for nt in range(3):
                a(f"ds_read_b128 {vr(base+8+4*nt,4)}, v10 offset:{(nt*12+ks)*1024}")
        rd(0, 0)
        for ks in range(12):
            bsel = ks % 2
            if ks + 1 < 12:
                rd(ks + 1, 1 - bsel)
                a("s_waitcnt lgkmcnt(5)")
            else:
                a("s_waitcnt lgkmcnt(0)")
            base = 16 + 20 * bsel
            for nt in range(3):
                for rt in range(2):
                    acc = vr(64 + 8 * nt + 4 * rt, 4)
                    c = "0" if ks == 0 else acc
                    H = vr(base + 4 * rt, 4); W = vr(base + 8 + 4 * nt, 4)
                    if is_v: a(f"v_mfma_f32_16x16x32_bf16 {acc}, {H}, {W}, {c}")
                    else:    a(f"v_mfma_f32_16x16x32_bf16 {acc}, {W}, {H}, {c}")
    mm(False)
    a(f"""v_lshrrev_b32 v10, 1, v7
    v_lshlrev_b32 v10, 9, v10
    v_lshl_add_u32 v10, v6, 4, v10
    v_and_b32 v11, 1, v7
    v_lshl_add_u32 v10, v11, 3, v10
    s_lshl_b32 s33, s27, 1
    s_add_u32 s33, s33, s34
    s_mul_i32 s33, s33, 24
    s_mul_i32 s29, s26, 6
    s_mul_i32 s30, s35, 3
    s_add_u32 s29, s29, s30              ; DT0
    s_add_u32 s33, s33, s29
    s_lshl_b32 s33, s33, 10
    s_add_u32 s33, s33, {TF}
    s_waitcnt vmcnt(24)""")
    for dt in range(3):
        for rt in range(2):
            acc = 64 + 8 * dt + 4 * rt
            a(f"""v_pk_mul_f32 {vr(acc,2)}, {vr(acc,2)}, {vr(112+4*dt,2)}
            v_pk_mul_f32 {vr(acc+2,2)}, {vr(acc+2,2)}, {vr(114+4*dt,2)}
            v_cvt_pk_bf16_f32 v{acc}, v{acc}, v{acc+1}
            v_cvt_pk_bf16_f32 v{acc+1}, v{acc+2}, v{acc+3}
            buffer_store_dwordx2 {vr(acc,2)}, v10, s[20:23], s33 offen offset:{1024*dt+256*rt} {SC1}""")
    a("""s_branch LN_g_done
    LN_g_v:""")
    mm(True)
    a(f"""v_lshrrev_b32 v10, 1, v7
    v_lshlrev_b32 v10, 10, v10
    v_and_b32 v11, 1, v7
    v_lshl_add_u32 v10, v11, 9, v10
    v_lshl_add_u32 v10, v6, 4, v10
    s_lshl_b32 s33, s24, 3
    s_lshr_b32 s29, s25, 1
    s_add_u32 s33, s33, s29
    s_mul_i32 s33, s33, 98304
    s_and_b32 s29, s25, 1
    s_lshl_b32 s29, s29, 1
    s_add_u32 s29, s29, s34
    s_lshl_b32 s29, s29, 11
    s_add_u32 s33, s33, s29
    s_add_u32 s33, s33, {VF}
    s_sub_u32 s29, s26, 4
    s_mul_i32 s29, s29, 6
    s_mul_i32 s30, s35, 3
    s_add_u32 s29, s29, s30""")
    for dt in range(3):
        acc = 64 + 8 * dt
        a(f"""s_add_u32 s30, s29, {dt}
        s_lshr_b32 s31, s30, 1
        s_lshl_b32 s31, s31, 13
        s_and_b32 s30, s30, 1
        s_lshl_b32 s30, s30, 8
        s_add_u32 s31, s31, s30
        s_add_u32 s31, s31, s33
        v_cvt_pk_bf16_f32 v{acc}, v{acc}, v{acc+1}
        v_cvt_pk_bf16_f32 v{acc+1}, v{acc+2}, v{acc+3}
        v_cvt_pk_bf16_f32 v{acc+2}, v{acc+4}, v{acc+5}
        v_cvt_pk_bf16_f32 v{acc+3}, v{acc+6}, v{acc+7}
        buffer_store_dwordx4 {vr(acc,4)}, v10, s[20:23], s31 offen {SC1}""")
    a("LN_g_done:")
    stamp(a, 11)
    a(f"""s_lshl_b32 s29, s27, 7
    s_lshl_b32 s30, s26, 2
    s_add_u32 s29, s29, s30
    s_add_u32 s29, s29, {FL+0x3000}
    s_lshl_b32 s30, s24, 3
    s_lshr_b32 s31, s25, 1
    s_add_u32 s30, s30, s31
    s_lshl_b32 s30, s30, 7
    s_and_b32 s31, s25, 1
    s_lshl_b32 s31, s31, 2
    s_add_u32 s31, s31, s26
    s_lshl_b32 s31, s31, 2
    s_add_u32 s30, s30, s31
    s_add_u32 s30, s30, {FL+0x4000-16}
    s_cmp_lt_u32 s26, 4
    s_cselect_b32 s29, s29, s30
    v_mov_b32 v14, s29""")
    signal(a, "sig1", 14, "1")
    stamp(a, 12)
    a(f"""s_min_u32 s29, s3, 2
    s_lshr_b32 s30, s26, 1
    s_mul_i32 s30, s30, 3
    s_add_u32 s64, s29, s30              ; dt32
    s_and_b32 s65, s26, 1                ; T
    s_lshl_b32 s29, s27, 6
    s_lshl_b32 s30, s65, 5
    s_add_u32 s29, s29, s30
    v_and_b32 v12, 31, v1
    v_add_u32 v12, s29, v12              ; q row
    v_mul_u32_u24 v12, 768, v12
    v_lshrrev_b32 v13, 5, v1             ; h
    v_lshl_add_u32 v12, v13, 3, v12
    s_lshl_b32 s66, s64, 6
    v_lshlrev_b32 v13, 4, v13
    s_mul_i32 s29, s24, 1536
    s_lshl_b32 s30, s64, 7
    s_add_u32 s29, s29, s30
    s_add_u32 s29, s29, {MOD+12288}""")
    for q in range(4):
        a(f"buffer_load_dwordx2 {vr(224+2*q,2)}, v12, s[44:47], s66 offen offset:{16*q}")
    for q in range(4):
        a(f"buffer_load_dwordx4 {vr(232+4*q,4)}, v13, s[20:23], s29 offen offset:{32*q} {LSC}")
    a(f"""s_lshl_b32 s29, s27, 7
    s_add_u32 s29, s29, {FL+0x3000}
    s_lshl_b32 s30, s24, 3
    s_add_u32 s30, s30, s26
    s_lshl_b32 s30, s30, 7
    s_add_u32 s30, s30, {FL+0x4000-16}
    v_lshl_add_u32 v14, v1, 2, s29
    v_lshl_add_u32 v15, v1, 2, s30
    v_cmp_gt_u32 vcc, 4, v1
    v_cndmask_b32 v14, v15, v14, vcc""")
    wait_flags(a, "w1", 14, "0xfff")
    stamp(a, 13)
    a(f"""s_mul_i32 s29, s27, 49152
    s_mul_i32 s30, s3, 12288
    s_add_u32 s29, s29, s30
    s_add_u32 s29, s29, {TF}
    s_add_u32 s30, s30, {L_T}""")
    dma_block(a, 12, 29, 30, 2, 32, LSC)
    a(f"""s_lshl_b32 s29, s24, 3
    s_add_u32 s29, s29, s26
    s_mul_i32 s29, s29, 98304
    s_mul_i32 s30, s3, 24576
    s_add_u32 s29, s29, s30
    s_add_u32 s29, s29, {VF}""")
    def v_load(f):
        if f % 4 == 0:
            a(f"s_add_u32 s30, s29, {1024*f}")
        a(f"buffer_load_dwordx4 {ar(96+4*f,4)}, v2, s[20:23], s30 offen offset:{1024*(f%4)} {LSC}")
    a("""s_waitcnt vmcnt(0)
    s_barrier""")
    stamp(a, 14)
    def rd(ks, bsel):
        for T in range(2):
            a(f"ds_read_b128 {vr(48+8*bsel+4*T,4)}, v2 offset:{L_T+(T*24+ks)*1024}")
    rd(0, 0)
    for ks in range(24):
        bsel = ks % 2
        if ks + 1 < 24:
            rd(ks + 1, 1 - bsel)
            a("s_waitcnt lgkmcnt(2)")
        else:
            a("s_waitcnt lgkmcnt(0)")
        for T in range(2):
            acc = vr(16 + 16 * T, 16)
            c = "0" if ks == 0 else acc
            a(f"v_mfma_f32_32x32x16_bf16 {acc}, {ar(4*ks,4)}, {vr(48+8*bsel+4*T,4)}, {c}")
        v_load(ks)
    stamp(a, 15)
    for T in range(2):
        A = 16 + 16 * T; m = 64 + T
        a(f"v_max3_f32 v{m}, v{A}, v{A+1}, v{A+2}")
        for i in range(3, 15, 2):
            a(f"v_max3_f32 v{m}, v{m}, v{A+i}, v{A+i+1}")
        a(f"v_max_f32 v{m}, v{m}, v{A+15}")
    for T in range(2):
        m = 64 + T
        a(f"""v_mov_b32 v{68+T}, v{m}
        v_permlane32_swap_b32 v{68+T}, v{m}
        v_max_f32 v{m}, v{m}, v{68+T}""")
    for T in range(2):
        A = 16 + 16 * T
        for i in range(8):
            a(f"v_pk_add_f32 {vr(A+2*i,2)}, {vr(A+2*i,2)}, v[64:65] op_sel:[0,{T}] op_sel_hi:[1,{T}] neg_lo:[0,1] neg_hi:[0,1]")
        for i in range(16):
            a(f"v_exp_f32 v{A+i}, v{A+i}")
        for i in range(4):
            a(f"v_pk_add_f32 {vr(72+2*i,2)}, {vr(A+4*i,2)}, {vr(A+4*i+2,2)}")
        a(f"""v_pk_add_f32 v[72:73], v[72:73], v[74:75]
        v_pk_add_f32 v[76:77], v[76:77], v[78:79]
        v_pk_add_f32 v[72:73], v[72:73], v[76:77]
        v_add_f32 v{66+T}, v72, v73""")
    for T in range(2):
        l = 66 + T
        a(f"""v_mov_b32 v{68+T}, v{l}
        v_permlane32_swap_b32 v{68+T}, v{l}
        v_add_f32 v{l}, v{l}, v{68+T}""")
    a(f"""v_cmp_gt_u32 vcc, 32, v1
    v_cndmask_b32 v70, v65, v64, vcc
    v_cndmask_b32 v71, v67, v66, vcc
    v_lshlrev_b32 v3, 3, v1
    s_lshl_b32 s29, s3, 9
    v_add_u32 v4, s29, v3
    ds_write_b64 v4, v[70:71] offset:{L_X}
    v_and_b32 v5, 31, v1
    v_lshlrev_b32 v5, 3, v5
    s_waitcnt lgkmcnt(0)
    s_barrier""")
    for T in range(2):
        for w in range(4):
            a(f"ds_read_b64 {vr(72+8*T+2*w,2)}, v5 offset:{L_X+512*w+256*T}")
    a("s_waitcnt lgkmcnt(0)")
    for T in range(2):
        B = 72 + 8 * T
        M = 88 + T; L = 90 + T; F = 92 + T
        a(f"""v_max3_f32 v{M}, v{B}, v{B+2}, v{B+4}
        v_max_f32 v{M}, v{M}, v{B+6}""")
        for w in range(4):
            a(f"v_sub_f32 v{B+2*w}, v{B+2*w}, v{M}")
        a(f"v_sub_f32 v{F}, v{64+T}, v{M}")
        for w in range(4):
            a(f"v_exp_f32 v{B+2*w}, v{B+2*w}")
        a(f"v_exp_f32 v{F}, v{F}")
        a(f"v_mul_f32 v{L}, v{B}, v{B+1}")
        for w in range(1, 4):
            a(f"v_fmac_f32 v{L}, v{B+2*w}, v{B+2*w+1}")
    a(f"""s_lshl_b32 s29, s3, 11
    s_add_u32 s29, s29, {L_P}
    v_add_u32 v4, s29, v2""")
    for T in range(2):
        A = 16 + 16 * T
        for i in range(8):
            a(f"v_pk_mul_f32 {vr(A+2*i,2)}, {vr(A+2*i,2)}, {vr(92,2)} op_sel:[0,{T}] op_sel_hi:[1,{T}]")
        for cs in range(2):
            D = 96 + 8 * T + 4 * cs
            a(f"""v_cvt_pk_bf16_f32 v{D}, v{A+4*cs}, v{A+4*cs+1}
            v_cvt_pk_bf16_f32 v{D+1}, v{A+4*cs+2}, v{A+4*cs+3}
            v_cvt_pk_bf16_f32 v{D+2}, v{A+8+4*cs}, v{A+8+4*cs+1}
            v_cvt_pk_bf16_f32 v{D+3}, v{A+8+4*cs+2}, v{A+8+4*cs+3}
            ds_write_b128 v4, {vr(D,4)} offset:{8192*T+1024*cs}""")
    a(f"""s_cmp_lg_u32 s3, 0
    s_cbranch_scc1 LN_noml
    v_cndmask_b32 v70, v89, v88, vcc
    v_cndmask_b32 v71, v91, v90, vcc
    v_lshlrev_b32 v3, 6, v1
    s_lshl_b32 s29, s27, 12
    s_lshl_b32 s30, s26, 3
    s_add_u32 s29, s29, s30
    s_add_u32 s29, s29, {ML}
    buffer_store_dwordx2 v[70:71], v3, s[20:23], s29 offen {SC1}
    LN_noml:
    s_waitcnt lgkmcnt(0)
    s_barrier""")
    stamp(a, 16)
    for ks in range(8):
        for T in range(2):
            a(f"ds_read_b128 {vr(16+(T*8+ks)*4,4)}, v2 offset:{L_P+8192*T+1024*ks}")
    a("s_waitcnt vmcnt(0)")
    for ks in range(8):
        a(f"s_waitcnt lgkmcnt({14-2*ks})")
        for i in range(3):
            for T in range(2):
                acc = vr(80 + (i * 2 + T) * 16, 16)
                c = "0" if ks == 0 else acc
                a(f"v_mfma_f32_32x32x16_bf16 {acc}, {ar(96+(i*8+ks)*4,4)}, {vr(16+(T*8+ks)*4,4)}, {c}")
    stamp(a, 17)
    a(f"""s_mul_i32 s29, s28, 49152
    s_mul_i32 s30, s3, 6144
    s_add_u32 s29, s29, s30
    s_add_u32 s29, s29, {OP}""")
    for T in range(2):
        for i in range(3):
            A = 80 + (i * 2 + T) * 16
            a(f"s_add_u32 s30, s29, {24576*T+2048*i}")
            for hf in range(2):
                for q in range(4):
                    a(f"v_cvt_pk_bf16_f32 v{A+8*hf+q}, v{A+8*hf+2*q}, v{A+8*hf+2*q+1}")
                a(f"buffer_store_dwordx4 {vr(A+8*hf,4)}, v2, s[20:23], s30 offen offset:{1024*hf} {SC1}")
    stamp(a, 18)
    a(f"""s_lshl_b32 s29, s27, 7
    s_add_u32 s29, s29, {FL+0x5000}
    s_lshl_b32 s30, s26, 2
    s_add_u32 s30, s30, s29
    v_mov_b32 v14, s30""")
    signal(a, "sig2", 14, "1")
    stamp(a, 19)
    a("v_lshl_add_u32 v14, v1, 2, s29")
    wait_flags(a, "w2", 14, "0xff")
    stamp(a, 20)
    a(f"""s_cmp_eq_u32 s3, 3
    s_cbranch_scc1 LN_fin
    v_and_b32 v4, 31, v1
    v_lshlrev_b32 v4, 6, v4
    s_lshl_b32 s29, s27, 12
    s_lshl_b32 s30, s65, 11
    s_add_u32 s29, s29, s30
    s_add_u32 s29, s29, {ML}""")
    for i in range(4):
        a(f"buffer_load_dwordx4 {vr(80+4*i,4)}, v4, s[20:23], s29 offen offset:{16*i} {LSC}")
    a(f"""s_mul_i32 s29, s27, {8*49152}
    s_mul_i32 s30, s65, 24576
    s_add_u32 s29, s29, s30
    s_lshl_b32 s30, s64, 11
    s_add_u32 s29, s29, s30
    s_add_u32 s29, s29, {OP}""")
    for jp in range(8):
        a(f"s_add_u32 s30, s29, {49152*jp}")
        for hf in range(2):
            a(f"buffer_load_dwordx4 {vr(16+8*jp+4*hf,4)}, v2, s[20:23], s30 offen offset:{1024*hf} {LSC}")
    a("""s_waitcnt vmcnt(16)
    v_max3_f32 v96, v80, v82, v84
    v_max3_f32 v96, v96, v86, v88
    v_max3_f32 v96, v96, v90, v92
    v_max_f32 v96, v96, v94""")
    for jj in range(8): a(f"v_sub_f32 v{80+2*jj}, v{80+2*jj}, v96")
    for jj in range(8): a(f"v_exp_f32 v{80+2*jj}, v{80+2*jj}")
    a("v_mul_f32 v97, v80, v81")
    for jj in range(1, 8): a(f"v_fmac_f32 v97, v{80+2*jj}, v{81+2*jj}")
    a("v_rcp_f32 v97, v97")
    for jj in range(8): a(f"v_mul_f32 v{80+2*jj}, v{80+2*jj}, v97")
    for jp in range(8):
        a(f"s_waitcnt vmcnt({14-2*jp})")
        for d in range(8):
            t = 120 + 2 * (d % 4)
            X = 16 + 8 * jp + d
            a(f"""v_lshlrev_b32 v{t}, 16, v{X}
            v_and_b32 v{t+1}, 0xffff0000, v{X}""")
            if jp == 0:
                a(f"v_pk_mul_f32 {vr(100+2*d,2)}, {vr(t,2)}, {vr(80+2*jp,2)} op_sel_hi:[1,0]")
            else:
                a(f"v_pk_fma_f32 {vr(100+2*d,2)}, {vr(t,2)}, {vr(80+2*jp,2)}, {vr(100+2*d,2)} op_sel_hi:[1,0,1]")
    for q in range(4):
        for hf in range(2):
            k = 100 + 4 * q + 2 * hf
            xr = 224 + 2 * q + hf
            a(f"""v_cvt_pk_bf16_f32 v120, v{k}, v{k+1}
            v_lshlrev_b32 v{k}, 16, v120
            v_and_b32 v{k+1}, 0xffff0000, v120
            v_pk_mul_f32 {vr(k,2)}, {vr(k,2)}, {vr(232+4*q+2*hf,2)}
            v_cvt_pk_bf16_f32 v120, v{k}, v{k+1}
            v_lshlrev_b32 v{k}, 16, v120
            v_and_b32 v{k+1}, 0xffff0000, v120
            v_lshlrev_b32 v122, 16, v{xr}
            v_and_b32 v123, 0xffff0000, v{xr}
            v_pk_add_f32 {vr(k,2)}, {vr(k,2)}, v[122:123]
            v_cvt_pk_bf16_f32 v{xr}, v{k}, v{k+1}""")
        a(f"buffer_store_dwordx2 {vr(224+2*q,2)}, v12, s[48:51], s66 offen offset:{16*q}")
    a(f"""LN_fin:
    s_or_b32 s29, s28, s3
    s_cmp_lg_u32 s29, 0
    s_cbranch_scc1 LN_noep
    v_lshlrev_b32 v4, 2, v1
    s_mov_b32 s68, 0x100000
    s_mov_b32 s29, 0x01010101
    LN_ep_loop:
    buffer_load_dword v5, v4, s[52:55], 0 offen sc1
    s_sub_u32 s68, s68, 1
    s_cmp_eq_u32 s68, 0
    s_cbranch_scc1 LN_ep_out
    s_waitcnt vmcnt(0)
    v_cmp_ne_u32 vcc, s29, v5
    s_nop 4
    s_cbranch_vccnz LN_ep_loop
    LN_ep_out:
    v_mov_b32 v4, {FL}
    v_mov_b32 v5, s67
    s_mov_b64 exec, 1
    buffer_store_dword v5, v4, s[20:23], 0 offen sc1
    s_mov_b64 exec, -1
    LN_noep:""")
    stamp(a, 21)
    if STAMP:
        a("s_waitcnt vmcnt(0)")
        stamp(a, 22)
    stamp_flush(a)
    a("""LN_exit:
    s_endpgm""")

def main(out):
    a = Asm()
    a('.amdgcn_target "amdgcn-amd-amdhsa--gfx950"')
    a('.text')
    gen(a)
    txt = HEADER
    txt += f"; @launch grid=(256,1,1) block=(256,1,1) lds={L_TOT}\n"
    txt += a.text()
    txt += f"""    .fill 64, 4, 0xbf800000
LN_codeend:
.section .rodata,"a"
.p2align 6
.amdhsa_kernel {KNAME}
  .amdhsa_next_free_vgpr 448
  .amdhsa_next_free_sgpr 96
  .amdhsa_accum_offset 256
  .amdhsa_group_segment_fixed_size 0
  .amdhsa_kernarg_size 64
  .amdhsa_user_sgpr_count 2
  .amdhsa_user_sgpr_kernarg_segment_ptr 1
  .amdhsa_system_sgpr_workgroup_id_x 1
.end_amdhsa_kernel
"""
    open(out, 'w').write(txt)

if __name__ == '__main__':
    if 'stamp' in sys.argv[2:]: STAMP = True
    if 'plain' in sys.argv[2:]: LSC = ''
    main(sys.argv[1] if len(sys.argv) > 1 else 'standalone__dit_adaln_block__diffusion.s')
```

```python
import sys, struct
from asmlib import Asm, vr, sr, ar

XN  = 0x000000
WF  = 0x200000
MOD = 0x300000
TF  = 0x400000
VF  = 0x600000
ML  = 0x780000
FL  = 0x7A0000
OP  = 0x800000
DBGW = 0x1400000
WS_SIZE = 0x1800000
CST = 384 ** -0.5 * 1.4426950408889634
KNAME = 'standalone__dit_adaln_block__diffusion_kernel'

L_W, L_H, L_GS = 0, 73728, 122880
L_TOT = 135168
L_P0B, L_P0R, L_P0C = 0, 36864, 61440
L_T, L_P, L_X = 0, 0, 49152

STAMP = False
SC1 = "sc1"
LSC = "sc1"
def f2u(f): return struct.unpack('<I', struct.pack('<f', f))[0]

HEADER = """; Kernarg layout for this problem (64 bytes, ptrs only, base s[0:1]):
"""

def srd(a, d, ptr, size):
    a(f"""s_mov_b32 s{d}, s{ptr}
    s_and_b32 s{d+1}, s{ptr+1}, 0xffff
    s_mov_b32 s{d+2}, {size}
    s_mov_b32 s{d+3}, 0x00020000""")

DBGOUT = False
DBGSEL = [0,1,2,4,5,7,8,10,11,13,14,16,17,19,20,22]
def stamp(a, idx):
    if DBGOUT:
        if idx not in DBGSEL: return
        idx = DBGSEL.index(idx)
    if STAMP:
        a(f"""s_memrealtime s[{70+2*(idx%2)}:{71+2*(idx%2)}]
        s_waitcnt lgkmcnt(0)
        v_writelane_b32 v255, s{70+2*(idx%2)}, {idx}""")
def stamp_flush(a):
    if STAMP:
        a(f"""s_lshl_b32 s70, s2, 2
        s_add_u32 s70, s70, s3
        s_lshl_b32 s70, s70, 8
        s_add_u32 s70, s70, {DBGW}
        v_lshlrev_b32 v254, 2, v1
        buffer_store_dword v255, v254, s[20:23], s70 offen""")

def bf16r(a, dst, src):
    a(f"""v_cvt_pk_bf16_f32 v{dst}, v{src}, v{src}
    v_lshlrev_b32 v{dst}, 16, v{dst}""")

def dma_block(a, nkb, s_glob, s_lds, voff, stmp, flags=""):
    for i in range(nkb):
        if i % 4 == 0:
            a(f"s_add_u32 m0, s{s_lds}, {1024*i}")
            a(f"s_add_u32 s{stmp}, s{s_glob}, {1024*i}")
        a(f"buffer_load_dwordx4 v{voff}, s[20:23], s{stmp} offen offset:{1024*(i%4)} {flags} lds")

def signal(a, tag, vaddr, smask, dbgbyte=False):
    a(f"""s_waitcnt vmcnt(0) lgkmcnt(0)
    s_barrier
    s_cmp_lg_u32 s3, 0
    s_cbranch_scc1 LN_{tag}_skip""")
    if dbgbyte:
        a(f"""v_readfirstlane_b32 s67, v3
        s_mul_i32 s67, s67, 0x9E3779B1
        s_add_u32 s67, s67, 0x7F4A7C15""")
    a(f"""v_mov_b32 v5, s67
    s_mov_b64 exec, {smask}
    buffer_store_dword v5, v{vaddr}, s[20:23], 0 offen sc1""")
    if dbgbyte:
        a(f"""v_mov_b32 v4, s28
        v_mov_b32 v5, 1
        s_mov_b64 exec, 1
        buffer_store_byte v5, v4, s[52:55], 0 offen sc1""")
    a(f"""s_mov_b64 exec, -1
    LN_{tag}_skip:""")

def wait_flags(a, tag, vaddr, smask):
    a(f"""s_cmp_lg_u32 s3, 0
    s_cbranch_scc1 LN_{tag}_done
    s_mov_b32 s68, 0x100000
    s_mov_b64 exec, {smask}
    LN_{tag}_loop:
    buffer_load_dword v5, v{vaddr}, s[20:23], 0 offen sc1
    s_sub_u32 s68, s68, 1
    s_cmp_eq_u32 s68, 0
    s_cbranch_scc1 LN_{tag}_out
    s_waitcnt vmcnt(0)
    v_cmp_ne_u32 vcc, s67, v5
    s_nop 4
    s_cbranch_vccnz LN_{tag}_loop
    LN_{tag}_out:
    s_mov_b64 exec, -1
    LN_{tag}_done:
    s_barrier""")

def gen(a):
    a(f""".globl {KNAME}
    .p2align 8
    .type {KNAME},@function
    {KNAME}:""")
    if STAMP: a("s_memrealtime s[72:73]")
    a(f"""s_cmp_ge_u32 s2, 256
    s_cbranch_scc1 LN_exit
    s_load_dwordx16 s[4:19], s[0:1], 0
    s_getpc_b64 s[30:31]
    LN_pc:
    v_and_b32 v1, 63, v0
    v_lshrrev_b32 v2, 6, v0
    s_lshr_b32 s32, s2, 3
    v_readfirstlane_b32 s3, v2
    v_lshlrev_b32 v2, 4, v1              ; lane*16
    s_lshl_b32 s32, s32, 2
    s_add_u32 s32, s32, s3
    s_and_b32 s32, s32, 31
    s_lshl_b32 s32, s32, 10
    s_min_u32 s32, s32, LN_codeend-LN_pc-1024
    s_add_u32 s30, s30, s32
    s_addc_u32 s31, s31, 0
    global_load_dword v4, v2, s[30:31]
    ; decode
    s_and_b32 s29, s2, 7
    s_lshr_b32 s24, s29, 2               ; b
    s_and_b32 s29, s29, 3
    s_lshl_b32 s29, s29, 2
    s_lshr_b32 s30, s2, 3
    s_and_b32 s30, s30, 3
    s_add_u32 s25, s29, s30              ; qin
    s_lshr_b32 s26, s2, 5                ; j
    s_lshl_b32 s27, s24, 4
    s_add_u32 s27, s27, s25              ; qt
    s_lshl_b32 s28, s27, 3
    s_add_u32 s28, s28, s26              ; lid
    v_and_b32 v6, 15, v1                 ; i / r16 / n16
    v_lshrrev_b32 v7, 4, v1              ; r4 / g
    v_mul_u32_u24 v8, 768, v7
    v_lshl_add_u32 v8, v6, 4, v8""")
    for s in range(9):
        a(f"""v_add_u32 v9, {64*s}, v1
        v_mul_u32_u24 v{100+s}, 43691, v9
        v_lshrrev_b32 v{100+s}, 18, v{100+s}
        v_mul_u32_u24 v10, 6, v{100+s}
        v_sub_u32 v9, v9, v10
        v_lshlrev_b32 v{110+s}, 4, v9""")
    a("s_waitcnt lgkmcnt(0)")
    srd(a, 20, 18, WS_SIZE)
    srd(a, 44, 4, 2048 * 768)
    srd(a, 48, 14, 2048 * 768)
    srd(a, 52, 16, 256)
    a(f"""v_mov_b32 v5, {FL}
    buffer_load_dword v3, v5, s[20:23], 0 offen sc1
    ; default sync0 signal: lane0 -> class (b, qin/2), slot 48 + (qin%2)*8 + j
    s_lshl_b32 s29, s24, 3
    s_lshr_b32 s30, s25, 1
    s_add_u32 s29, s29, s30
    s_lshl_b32 s29, s29, 8
    s_and_b32 s30, s25, 1
    s_lshl_b32 s30, s30, 3
    s_add_u32 s30, s30, s26
    s_add_u32 s30, s30, 48
    s_lshl_b32 s30, s30, 2
    s_add_u32 s29, s29, s30
    s_add_u32 s69, s29, {FL+0x1000}
    v_mov_b32 v14, s69
    s_mov_b64 s[74:75], 1""")
    if STAMP:
        a("""v_mov_b32 v255, 0
        v_writelane_b32 v255, s72, 0""")
        stamp(a, 1)
    for p in range(4):
        a(f"""s_lshl_b32 s{36+p}, s26, 1
        s_add_u32 s{36+p}, s{36+p}, s3
        s_add_u32 s{36+p}, s{36+p}, {4*p}
        s_and_b32 s{36+p}, s{36+p}, 15
        s_lshl_b32 s29, s27, 4
        s_add_u32 s29, s29, s{36+p}
        s_mul_i32 s{40+p}, s29, 3072""")
    def xloads(p):
        for n in range(3):
            a(f"buffer_load_dwordx4 {vr(16+12*p+4*n,4)}, v8, s[44:47], s{40+p} offen offset:{256*n}")
    xloads(0)
    a(f"""s_lshr_b32 s78, s2, 3                ; t
    s_and_b32 s79, s2, 7
    s_mov_b32 s33, 3
    s_cmp_ge_u32 s78, 27
    s_cbranch_scc1 LN_p0_none
    s_mul_i32 s29, s3, 9216
    s_cmp_ge_u32 s78, 24
    s_cbranch_scc1 LN_p0_mod
    ; ---- fold: mat s33 = x/4, it s34 = 6*((x/2)%2) + t/4, n48 s35 = 4*(x%2) + t%4
    s_lshr_b32 s33, s79, 2
    s_bfe_u32 s34, s79, 0x10001
    s_mul_i32 s34, s34, 6
    s_lshr_b32 s30, s78, 2
    s_add_u32 s34, s34, s30
    s_and_b32 s35, s79, 1
    s_lshl_b32 s35, s35, 2
    s_and_b32 s30, s78, 3
    s_add_u32 s35, s35, s30""")
    srd(a, 56, 8, 384 * 2304)
    a(f"""s_lshl_b32 s30, s33, 2
    s_lshr_b32 s31, s35, 1
    s_add_u32 s30, s30, s31              ; jw
    s_lshl_b32 s30, s30, 8
    s_lshl_b32 s31, s34, 1
    s_and_b32 s32, s35, 1
    s_add_u32 s31, s31, s32
    s_lshl_b32 s31, s31, 2
    s_add_u32 s30, s30, s31
    s_add_u32 s30, s30, {FL+0x1000-2048}
    v_lshlrev_b32 v14, 11, v1
    v_add_u32 v14, s30, v14
    v_writelane_b32 v14, s69, 0
    s_mov_b64 s[74:75], 7""")
    a(f"""s_lshl_b32 s30, s34, 5
    v_add_u32 v9, s30, v6
    v_mul_u32_u24 v9, 2304, v9
    v_lshl_add_u32 v9, v7, 4, v9
    s_mul_i32 s31, s3, 192
    v_add_u32 v9, s31, v9
    s_mul_i32 s30, s33, 1536
    s_add_u32 s32, s30, 36864""")
    for mt in range(2):
        for ks in range(3):
            a(f"buffer_load_dwordx4 {vr(120+(mt*3+ks)*4,4)}, v9, s[56:59], s{30 if mt==0 else 32} offen offset:{64*ks}")
    a(f"""s_cmp_eq_u32 s33, 1
    s_cbranch_scc1 LN_p0_vo
    s_mul_i32 s30, s35, 48
    v_add_u32 v9, s30, v6
    v_mul_u32_u24 v9, 2304, v9
    v_lshl_add_u32 v9, v7, 4, v9
    v_add_u32 v9, s31, v9""")
    for nt in range(3):
        a(f"s_mov_b32 s30, {768+36864*nt}")
        for ks in range(3):
            a(f"buffer_load_dwordx4 {vr(144+(nt*3+ks)*4,4)}, v9, s[56:59], s30 offen offset:{64*ks}")
    a("""s_branch LN_p0_none
    LN_p0_vo:""")
    srd(a, 60, 10, 384 * 768)
    a(f"""s_mul_i32 s30, s3, {96*768}
    s_mul_i32 s31, s35, 96
    s_add_u32 s30, s30, s31""")
    for s in range(9):
        a(f"""v_mul_u32_u24 v9, 768, v{100+s}
        v_add_u32 v9, v9, v{110+s}
        s_add_u32 m0, s29, {L_P0B+1024*s}
        buffer_load_dwordx4 v9, s[60:63], s30 offen lds""")
    a("s_branch LN_p0_none")
    a("LN_p0_mod:")
    srd(a, 56, 6, 1536)
    srd(a, 60, 12, 384 * 4608)
    a(f"""s_sub_u32 s35, s78, 24
    s_lshl_b32 s35, s35, 3
    s_add_u32 s35, s35, s79
    s_lshl_b32 s30, s35, 2
    s_add_u32 s30, s30, {FL+0x1000+96-256}
    v_lshlrev_b32 v14, 8, v1
    v_add_u32 v14, s30, v14
    v_writelane_b32 v14, s69, 0
    s_mov_b64 s[74:75], 0x1ffff
    s_mov_b32 s33, 2
    v_lshlrev_b32 v9, 2, v1
    s_mul_i32 s30, s3, 192
    s_add_u32 s31, s30, 768
    buffer_load_dword v12, v9, s[56:59], s30 offen
    buffer_load_dword v13, v9, s[56:59], s31 offen
    s_mul_i32 s30, s3, {96*4608}
    s_mul_i32 s31, s35, 96
    s_add_u32 s30, s30, s31""")
    for s in range(9):
        a(f"""v_mul_u32_u24 v9, 4608, v{100+s}
        v_add_u32 v9, v9, v{110+s}
        s_add_u32 m0, s29, {L_P0B+1024*s}
        buffer_load_dwordx4 v9, s[60:63], s30 offen lds""")
    def ln_pass(p):
        X = 16 + 12 * p
        for i in range(12):
            a(f"v_lshlrev_b32 v{64+2*i}, 16, v{X+i}")
            a(f"v_and_b32 v{65+2*i}, 0xffff0000, v{X+i}")
        for i in range(6):
            a(f"v_pk_add_f32 {vr(88+2*i,2)}, {vr(64+4*i,2)}, {vr(66+4*i,2)}")
        for i in range(3):
            a(f"v_pk_add_f32 {vr(88+2*i,2)}, {vr(88+2*i,2)}, {vr(94+2*i,2)}")
        a("""v_pk_add_f32 v[88:89], v[88:89], v[90:91]
        v_pk_add_f32 v[88:89], v[88:89], v[92:93]
        v_add_f32 v88, v88, v89""")
        for ror in (8, 4, 2, 1):
            a(f"v_add_f32_dpp v88, v88, v88 row_ror:{ror} row_mask:0xf bank_mask:0xf")
        a(f"v_mul_f32 v88, {f2u(1/384):#x}, v88")
        bf16r(a, 89, 88)
        for i in range(12):
            a(f"v_pk_add_f32 {vr(64+2*i,2)}, {vr(64+2*i,2)}, v[88:89] op_sel:[0,1] op_sel_hi:[1,1] neg_lo:[0,1] neg_hi:[0,1]")
        a("""v_pk_mul_f32 v[90:91], v[64:65], v[64:65]
        v_pk_mul_f32 v[92:93], v[66:67], v[66:67]""")
        for i in range(2, 12):
            acc = 90 + 2 * (i % 2)
            a(f"v_pk_fma_f32 {vr(acc,2)}, {vr(64+2*i,2)}, {vr(64+2*i,2)}, {vr(acc,2)}")
        a("""v_pk_add_f32 v[90:91], v[90:91], v[92:93]
        v_sub_f32 v88, v88, v89
        v_add_f32 v90, v90, v91""")
        for ror in (8, 4, 2, 1):
            a(f"v_add_f32_dpp v90, v90, v90 row_ror:{ror} row_mask:0xf bank_mask:0xf")
        a(f"""v_mul_f32 v90, {f2u(1/384):#x}, v90
        v_fma_f32 v90, -v88, v88, v90
        v_max_f32 v90, 0, v90""")
        bf16r(a, 90, 90)
        a(f"v_add_f32 v90, {f2u(1e-5):#x}, v90")
        bf16r(a, 90, 90)
        a("v_sqrt_f32 v90, v90")
        bf16r(a, 90, 90)
        a("v_rcp_f32 v90, v90")
        for i in range(12):
            a(f"v_pk_mul_f32 {vr(64+2*i,2)}, {vr(64+2*i,2)}, v[90:91] op_sel_hi:[1,0]")
        for i in range(12):
            a(f"v_cvt_pk_bf16_f32 v{X+i}, v{64+2*i}, v{65+2*i}")
    a("""LN_p0_none:""")
    for p in range(1, 4): xloads(p)
    a("""s_cmp_eq_u32 s33, 3
    s_cbranch_scc1 LN_w9
    s_cmp_eq_u32 s33, 2
    s_cbranch_scc1 LN_w20
    s_waitcnt vmcnt(24)
    s_branch LN_wd
    LN_w20:
    s_waitcnt vmcnt(20)
    s_branch LN_wd
    LN_w9:
    s_waitcnt vmcnt(9)
    LN_wd:""")
    stamp(a, 2)
    STORE_NOTE = None
    ln_pass(0)
    a(f"""s_cmp_ge_u32 s3, 2
    s_cbranch_scc1 LN_nopub
    v_lshrrev_b32 v9, 1, v6
    v_lshlrev_b32 v9, 10, v9
    v_and_b32 v10, 1, v6
    v_lshl_add_u32 v9, v10, 9, v9
    v_lshl_add_u32 v9, v7, 4, v9
    s_lshr_b32 s29, s36, 3               ; gi/8
    s_lshl_b32 s30, s27, 1
    s_add_u32 s29, s29, s30
    s_mul_i32 s29, s29, 24576
    s_and_b32 s30, s36, 7
    s_lshl_b32 s30, s30, 6
    s_add_u32 s29, s29, s30
    s_add_u32 s29, s29, {XN}""")
    for n in range(3):
        a(f"""s_add_u32 s30, s29, {8192*n}
        buffer_store_dwordx4 {vr(16+4*n,4)}, v9, s[20:23], s30 offen {SC1}""")
    a("LN_nopub:")
    stamp(a, 3)
    a("""s_cmp_eq_u32 s33, 3
    s_cbranch_scc1 LN_p0_ln
    s_mul_i32 s29, s3, 9216
    s_cmp_eq_u32 s33, 0
    s_cbranch_scc0 LN_p0_notqk
    s_waitcnt vmcnt(9)
    s_branch LN_p0_mm
    LN_p0_notqk:
    s_cmp_eq_u32 s33, 1
    s_cbranch_scc1 LN_p0_tr""")
    for i in range(24):
        a(f"v_mov_b32 v{120+i}, 0")
    a("""s_waitcnt vmcnt(18)
    v_lshlrev_b32 v64, 16, v12
    v_and_b32 v65, 0xffff0000, v12
    v_lshlrev_b32 v66, 16, v13
    v_and_b32 v67, 0xffff0000, v13""")
    for i in range(4): a(f"v_mul_f32 v{68+i}, 0xbfb8aa3b, v{64+i}")
    for i in range(4): a(f"v_exp_f32 v{68+i}, v{68+i}")
    for i in range(4): a(f"v_add_f32 v{68+i}, 1.0, v{68+i}")
    for i in range(4): a(f"v_rcp_f32 v{68+i}, v{68+i}")
    for i in range(4): a(f"v_mul_f32 v{64+i}, v{64+i}, v{68+i}")
    a(f"""v_cvt_pk_bf16_f32 v12, v64, v65
    v_cvt_pk_bf16_f32 v13, v66, v67
    s_lshl_b32 s30, s3, 9
    s_add_u32 s30, s30, {L_P0C}
    v_lshl_add_u32 v9, v1, 2, s30
    ds_write_b32 v9, v12
    ds_write_b32 v9, v13 offset:256
    v_lshlrev_b32 v9, 8, v6
    v_lshl_add_u32 v9, v7, 4, v9
    v_add_u32 v9, s30, v9
    s_mov_b32 s30, 0x00030003
    s_mov_b32 s31, 0x00030003
    s_waitcnt lgkmcnt(0)
    s_mov_b64 exec, s[30:31]""")
    for ks in range(3):
        a(f"ds_read_b128 {vr(120+ks*4,4)}, v9 offset:{64*ks}")
    a("""s_mov_b64 exec, -1
    LN_p0_tr:
    ; tr-read address: region + (8g + r)*96 + 8c  (r = (l%16)/4, c = l%4)
    v_lshrrev_b32 v9, 2, v6
    v_lshl_add_u32 v9, v7, 3, v9
    v_mul_u32_u24 v9, 96, v9
    v_and_b32 v10, 3, v6
    v_lshl_add_u32 v9, v10, 3, v9
    v_add_u32 v9, s29, v9
    s_waitcnt vmcnt(9)""")
    for nt in range(3):
        for ks in range(3):
            for jj in range(2):
                a(f"ds_read_b64_tr_b16 {vr(144+(nt*3+ks)*4+2*jj,2)}, v9 offset:{L_P0B+(32*ks+4*jj)*96+32*nt}")
    a("""s_waitcnt lgkmcnt(0)
    LN_p0_mm:""")
    for ks in range(3):
        for nt in range(3):
            for mt in range(2):
                acc = vr(180 + (nt * 2 + mt) * 4, 4)
                c = "0" if ks == 0 else acc
                a(f"v_mfma_f32_16x16x32_bf16 {acc}, {vr(120+(mt*3+ks)*4,4)}, {vr(144+(nt*3+ks)*4,4)}, {c}")
    a(f"""s_mul_i32 s30, s3, 6144
    v_add_u32 v9, s30, v2""")
    for t in range(6):
        a(f"ds_write_b128 v9, {vr(180+4*t,4)} offset:{L_P0R+1024*t}")
    a(f"""s_lshl_b32 s30, s3, 11
    v_add_u32 v9, s30, v2
    s_waitcnt lgkmcnt(0)
    s_barrier
    s_cmp_eq_u32 s3, 3
    s_cbranch_scc1 LN_p0_ln""")
    for w in range(4):
        for mt in range(2):
            a(f"ds_read_b128 {vr(120+(w*2+mt)*4,4)}, v9 offset:{L_P0R+6144*w+1024*mt}")
    a("s_waitcnt lgkmcnt(0)")
    for i in range(4):
        a(f"v_pk_add_f32 {vr(120+2*i,2)}, {vr(120+2*i,2)}, {vr(128+2*i,2)}")
        a(f"v_pk_add_f32 {vr(136+2*i,2)}, {vr(136+2*i,2)}, {vr(144+2*i,2)}")
    for i in range(4):
        a(f"v_pk_add_f32 {vr(120+2*i,2)}, {vr(120+2*i,2)}, {vr(136+2*i,2)}")
    a(f"""s_cmp_eq_u32 s33, 2
    s_cbranch_scc1 LN_p0_modfin
    v_cvt_pk_bf16_f32 v120, v120, v121
    v_cvt_pk_bf16_f32 v121, v122, v123
    v_cvt_pk_bf16_f32 v122, v124, v125
    v_cvt_pk_bf16_f32 v123, v126, v127
    s_mul_i32 s30, s33, 24
    s_mul_i32 s31, s35, 3
    s_add_u32 s30, s30, s31
    s_add_u32 s30, s30, s3
    s_mul_i32 s30, s30, 12
    s_add_u32 s30, s30, s34
    s_lshl_b32 s30, s30, 10
    s_add_u32 s30, s30, {WF}
    v_lshrrev_b32 v9, 1, v7
    v_lshlrev_b32 v9, 8, v9
    v_lshl_add_u32 v9, v6, 4, v9
    v_and_b32 v10, 1, v7
    v_lshl_add_u32 v9, v10, 3, v9
    buffer_store_dwordx2 v[120:121], v9, s[20:23], s30 offen {SC1}
    buffer_store_dwordx2 v[122:123], v9, s[20:23], s30 offen offset:512 {SC1}
    s_branch LN_p0_ln
    LN_p0_modfin:
    v_cvt_pk_bf16_f32 v122, v120, v121
    v_lshlrev_b32 v120, 16, v122
    v_and_b32 v121, 0xffff0000, v122
    s_lshr_b32 s30, s35, 3               ; sec
    s_and_b32 s31, s35, 7
    s_mul_i32 s31, s31, 48
    s_lshl_b32 s32, s3, 4
    s_add_u32 s31, s31, s32
    v_add_u32 v9, s31, v1                ; d
    v_lshrrev_b32 v11, 3, v9
    v_and_b32 v10, 7, v9
    v_lshlrev_b32 v11, 6, v11
    v_lshl_add_u32 v10, v10, 2, v11
    v_lshlrev_b32 v9, 2, v9
    s_mov_b32 s32, {MOD}
    s_mov_b64 exec, 0xffff
    s_cmp_eq_u32 s30, 1
    s_cbranch_scc1 LN_p0_scale
    s_cmp_eq_u32 s30, 2
    s_cbranch_scc1 LN_p0_gate
    buffer_store_dword v120, v10, s[20:23], s32 offen offset:32 {SC1}
    buffer_store_dword v121, v10, s[20:23], s32 offen offset:{3072+32} {SC1}
    s_branch LN_p0_modend
    LN_p0_scale:
    v_add_f32 v120, 1.0, v120
    v_add_f32 v121, 1.0, v121
    v_cvt_pk_bf16_f32 v122, v120, v121
    v_lshlrev_b32 v120, 16, v122
    v_and_b32 v121, 0xffff0000, v122
    v_mul_f32 v122, {f2u(CST):#x}, v120
    v_mul_f32 v123, {f2u(CST):#x}, v121
    s_mov_b32 s31, {MOD+8192}
    buffer_store_dword v120, v10, s[20:23], s32 offen {SC1}
    buffer_store_dword v121, v10, s[20:23], s32 offen offset:3072 {SC1}
    buffer_store_dword v122, v9, s[20:23], s31 offen {SC1}
    buffer_store_dword v123, v9, s[20:23], s31 offen offset:1536 {SC1}
    s_branch LN_p0_modend
    LN_p0_gate:
    s_mov_b32 s31, {MOD+12288}
    buffer_store_dword v120, v9, s[20:23], s31 offen {SC1}
    buffer_store_dword v121, v9, s[20:23], s31 offen offset:1536 {SC1}
    LN_p0_modend:
    s_mov_b64 exec, -1
    s_branch LN_p0_ln
    LN_p0_ln:""")
    stamp(a, 4)
    signal(a, "sig0", 14, "s[74:75]", dbgbyte=True)
    stamp(a, 5)
    for p in range(1, 4): ln_pass(p)
    stamp(a, 6)
    a(f"""s_lshl_b32 s29, s24, 3
    s_add_u32 s29, s29, s26
    s_lshl_b32 s29, s29, 8
    s_add_u32 s29, s29, {FL+0x1000}
    v_lshl_add_u32 v14, v1, 2, s29""")
    wait_flags(a, "w0", 14, "-1")
    stamp(a, 7)
    a(f"""s_mul_i32 s30, s24, 3072
    s_add_u32 s30, s30, {MOD}
    s_mul_i32 s31, s3, 3072
    s_add_u32 s31, s31, {L_GS}""")
    dma_block(a, 3, 30, 31, 2, 32, LSC)
    a(f"""s_mul_i32 s29, s26, 73728
    s_mul_i32 s30, s3, 18432
    s_add_u32 s29, s29, s30
    s_add_u32 s29, s29, {WF}
    s_add_u32 s30, s30, {L_W}""")
    dma_block(a, 18, 29, 30, 2, 32, LSC)
    a(f"""s_and_b32 s34, s3, 1                 ; rh
    s_lshr_b32 s35, s3, 1                ; ch
    s_and_b32 s29, s26, 3
    s_mul_i32 s29, s29, 96
    s_mul_i32 s30, s35, 48
    s_add_u32 s29, s29, s30
    s_mul_i32 s30, s24, 384
    s_add_u32 s29, s29, s30
    s_lshl_b32 s29, s29, 2
    s_add_u32 s29, s29, {MOD+8192}
    v_lshlrev_b32 v9, 4, v7""")
    for dt in range(3):
        a(f"buffer_load_dwordx4 {vr(112+4*dt,4)}, v9, s[20:23], s29 offen offset:{64*dt} {LSC}")
    a(f"""s_lshl_b32 s29, s24, 5
    s_lshl_b32 s30, s26, 2
    s_add_u32 s29, s29, s30
    s_add_u32 s29, s29, s3
    s_mul_i32 s29, s29, 24576
    s_add_u32 s29, s29, {XN}""")
    a("s_mov_b32 s76, s29")
    def xnk_load(ks):
        if ks % 4 == 0:
            a(f"s_add_u32 s77, s76, {1024*ks}")
        a(f"buffer_load_dwordx4 {ar(4*ks,4)}, v2, s[20:23], s77 offen offset:{1024*(ks%4)} {LSC}")
    a(f"""v_lshlrev_b32 v9, 6, v6
    v_add_u32 v9, s31, v9
    s_waitcnt vmcnt(21)""")
    for n in range(3):
        for q in range(4):
            a(f"ds_read_b128 {vr(64+16*n+4*q,4)}, v9 offset:{1024*n+16*q}")
    a(f"""v_lshrrev_b32 v9, 2, v6
    v_lshlrev_b32 v9, 10, v9
    v_and_b32 v10, 3, v6
    v_lshl_add_u32 v9, v10, 8, v9
    v_and_b32 v10, 7, v6
    v_xor_b32 v10, v10, v7
    v_lshl_add_u32 v9, v10, 4, v9
    s_waitcnt lgkmcnt(0)""")
    stamp(a, 8)
    for p in range(4):
        a(f"""s_and_b32 s29, s{36+p}, 3
        s_lshl_b32 s29, s29, 6
        s_lshr_b32 s30, s{36+p}, 2
        s_mul_i32 s30, s30, 12288
        s_add_u32 s30, s30, {L_H}
        v_xor_b32 v15, s29, v9
        v_add_u32 v15, s30, v15""")
        for n in range(3):
            X = 16 + 12 * p + 4 * n
            for d in range(4):
                t = 124 + 2 * (d % 2)
                a(f"""v_lshlrev_b32 v{t}, 16, v{X+d}
                v_and_b32 v{t+1}, 0xffff0000, v{X+d}
                v_pk_fma_f32 {vr(t,2)}, {vr(t,2)}, {vr(64+16*n+2*d,2)}, {vr(64+16*n+8+2*d,2)}
                v_cvt_pk_bf16_f32 v{X+d}, v{t}, v{t+1}""")
            a(f"ds_write_b128 v15, {vr(X,4)} offset:{4096*n}")
            xnk_load(2 * (3 * p + n)); xnk_load(2 * (3 * p + n) + 1)
    stamp(a, 9)
    a(f"""v_xor_b32 v9, v6, v7
    v_lshlrev_b32 v9, 4, v9
    v_lshl_add_u32 v9, v7, 8, v9
    s_mul_i32 s29, s34, 24576
    s_add_u32 s29, s29, {L_H}
    v_add_u32 v8, s29, v9
    v_xor_b32 v9, 64, v8
    s_mul_i32 s29, s35, 36864
    s_add_u32 s29, s29, {L_W}
    v_add_u32 v10, s29, v2
    s_waitcnt vmcnt(27) lgkmcnt(0)
    s_barrier""")
    stamp(a, 10)
    a("""s_cmp_ge_u32 s26, 4
    s_cbranch_scc1 LN_g_v""")
    def mm(is_v):
        def rd(ks, bsel):
            base = 16 + 20 * bsel
            for rt in range(2):
                a(f"ds_read_b128 {vr(base+4*rt,4)}, v{8+(ks%2)} offset:{(rt*12+ks)*1024}")
            for nt in range(3):
                a(f"ds_read_b128 {vr(base+8+4*nt,4)}, v10 offset:{(nt*12+ks)*1024}")
        rd(0, 0)
        for ks in range(12):
            bsel = ks % 2
            if ks + 1 < 12:
                rd(ks + 1, 1 - bsel)
                a("s_waitcnt lgkmcnt(5)")
            else:
                a("s_waitcnt lgkmcnt(0)")
            base = 16 + 20 * bsel
            for nt in range(3):
                for rt in range(2):
                    acc = vr(64 + 8 * nt + 4 * rt, 4)
                    c = "0" if ks == 0 else acc
                    H = vr(base + 4 * rt, 4); W = vr(base + 8 + 4 * nt, 4)
                    if is_v: a(f"v_mfma_f32_16x16x32_bf16 {acc}, {H}, {W}, {c}")
                    else:    a(f"v_mfma_f32_16x16x32_bf16 {acc}, {W}, {H}, {c}")
    mm(False)
    a(f"""v_lshrrev_b32 v10, 1, v7
    v_lshlrev_b32 v10, 9, v10
    v_lshl_add_u32 v10, v6, 4, v10
    v_and_b32 v11, 1, v7
    v_lshl_add_u32 v10, v11, 3, v10
    s_lshl_b32 s33, s27, 1
    s_add_u32 s33, s33, s34
    s_mul_i32 s33, s33, 24
    s_mul_i32 s29, s26, 6
    s_mul_i32 s30, s35, 3
    s_add_u32 s29, s29, s30              ; DT0
    s_add_u32 s33, s33, s29
    s_lshl_b32 s33, s33, 10
    s_add_u32 s33, s33, {TF}
    s_waitcnt vmcnt(24)""")
    for dt in range(3):
        for rt in range(2):
            acc = 64 + 8 * dt + 4 * rt
            a(f"""v_pk_mul_f32 {vr(acc,2)}, {vr(acc,2)}, {vr(112+4*dt,2)}
            v_pk_mul_f32 {vr(acc+2,2)}, {vr(acc+2,2)}, {vr(114+4*dt,2)}
            v_cvt_pk_bf16_f32 v{acc}, v{acc}, v{acc+1}
            v_cvt_pk_bf16_f32 v{acc+1}, v{acc+2}, v{acc+3}
            buffer_store_dwordx2 {vr(acc,2)}, v10, s[20:23], s33 offen offset:{1024*dt+256*rt} {SC1}""")
    a("""s_branch LN_g_done
    LN_g_v:""")
    mm(True)
    a(f"""v_lshrrev_b32 v10, 1, v7
    v_lshlrev_b32 v10, 10, v10
    v_and_b32 v11, 1, v7
    v_lshl_add_u32 v10, v11, 9, v10
    v_lshl_add_u32 v10, v6, 4, v10
    s_lshl_b32 s33, s24, 3
    s_lshr_b32 s29, s25, 1
    s_add_u32 s33, s33, s29
    s_mul_i32 s33, s33, 98304
    s_and_b32 s29, s25, 1
    s_lshl_b32 s29, s29, 1
    s_add_u32 s29, s29, s34
    s_lshl_b32 s29, s29, 11
    s_add_u32 s33, s33, s29
    s_add_u32 s33, s33, {VF}
    s_sub_u32 s29, s26, 4
    s_mul_i32 s29, s29, 6
    s_mul_i32 s30, s35, 3
    s_add_u32 s29, s29, s30""")
    for dt in range(3):
        acc = 64 + 8 * dt
        a(f"""s_add_u32 s30, s29, {dt}
        s_lshr_b32 s31, s30, 1
        s_lshl_b32 s31, s31, 13
        s_and_b32 s30, s30, 1
        s_lshl_b32 s30, s30, 8
        s_add_u32 s31, s31, s30
        s_add_u32 s31, s31, s33
        v_cvt_pk_bf16_f32 v{acc}, v{acc}, v{acc+1}
        v_cvt_pk_bf16_f32 v{acc+1}, v{acc+2}, v{acc+3}
        v_cvt_pk_bf16_f32 v{acc+2}, v{acc+4}, v{acc+5}
        v_cvt_pk_bf16_f32 v{acc+3}, v{acc+6}, v{acc+7}
        buffer_store_dwordx4 {vr(acc,4)}, v10, s[20:23], s31 offen {SC1}""")
    a("LN_g_done:")
    stamp(a, 11)
    a(f"""s_lshl_b32 s29, s27, 7
    s_lshl_b32 s30, s26, 2
    s_add_u32 s29, s29, s30
    s_add_u32 s29, s29, {FL+0x3000}
    s_lshl_b32 s30, s24, 3
    s_lshr_b32 s31, s25, 1
    s_add_u32 s30, s30, s31
    s_lshl_b32 s30, s30, 7
    s_and_b32 s31, s25, 1
    s_lshl_b32 s31, s31, 2
    s_add_u32 s31, s31, s26
    s_lshl_b32 s31, s31, 2
    s_add_u32 s30, s30, s31
    s_add_u32 s30, s30, {FL+0x4000-16}
    s_cmp_lt_u32 s26, 4
    s_cselect_b32 s29, s29, s30
    v_mov_b32 v14, s29""")
    signal(a, "sig1", 14, "1")
    stamp(a, 12)
    a(f"""s_min_u32 s29, s3, 2
    s_lshr_b32 s30, s26, 1
    s_mul_i32 s30, s30, 3
    s_add_u32 s64, s29, s30              ; dt32
    s_and_b32 s65, s26, 1                ; T
    s_lshl_b32 s29, s27, 6
    s_lshl_b32 s30, s65, 5
    s_add_u32 s29, s29, s30
    v_and_b32 v12, 31, v1
    v_add_u32 v12, s29, v12              ; q row
    v_mul_u32_u24 v12, 768, v12
    v_lshrrev_b32 v13, 5, v1             ; h
    v_lshl_add_u32 v12, v13, 3, v12
    s_lshl_b32 s66, s64, 6
    v_lshlrev_b32 v13, 4, v13
    s_mul_i32 s29, s24, 1536
    s_lshl_b32 s30, s64, 7
    s_add_u32 s29, s29, s30
    s_add_u32 s29, s29, {MOD+12288}""")
    for q in range(4):
        a(f"buffer_load_dwordx2 {vr(224+2*q,2)}, v12, s[44:47], s66 offen offset:{16*q}")
    for q in range(4):
        a(f"buffer_load_dwordx4 {vr(232+4*q,4)}, v13, s[20:23], s29 offen offset:{32*q} {LSC}")
    a(f"""s_lshl_b32 s29, s27, 7
    s_add_u32 s29, s29, {FL+0x3000}
    s_lshl_b32 s30, s24, 3
    s_add_u32 s30, s30, s26
    s_lshl_b32 s30, s30, 7
    s_add_u32 s30, s30, {FL+0x4000-16}
    v_lshl_add_u32 v14, v1, 2, s29
    v_lshl_add_u32 v15, v1, 2, s30
    v_cmp_gt_u32 vcc, 4, v1
    v_cndmask_b32 v14, v15, v14, vcc""")
    wait_flags(a, "w1", 14, "0xfff")
    stamp(a, 13)
    a(f"""s_mul_i32 s29, s27, 49152
    s_mul_i32 s30, s3, 12288
    s_add_u32 s29, s29, s30
    s_add_u32 s29, s29, {TF}
    s_add_u32 s30, s30, {L_T}""")
    dma_block(a, 12, 29, 30, 2, 32, LSC)
    a(f"""s_lshl_b32 s29, s24, 3
    s_add_u32 s29, s29, s26
    s_mul_i32 s29, s29, 98304
    s_mul_i32 s30, s3, 24576
    s_add_u32 s29, s29, s30
    s_add_u32 s29, s29, {VF}""")
    def v_load(f):
        if f % 4 == 0:
            a(f"s_add_u32 s30, s29, {1024*f}")
        a(f"buffer_load_dwordx4 {ar(96+4*f,4)}, v2, s[20:23], s30 offen offset:{1024*(f%4)} {LSC}")
    a("""s_waitcnt vmcnt(0)
    s_barrier""")
    stamp(a, 14)
    def rd(ks, bsel):
        for T in range(2):
            a(f"ds_read_b128 {vr(48+8*bsel+4*T,4)}, v2 offset:{L_T+(T*24+ks)*1024}")
    rd(0, 0)
    for ks in range(24):
        bsel = ks % 2
        if ks + 1 < 24:
            rd(ks + 1, 1 - bsel)
            a("s_waitcnt lgkmcnt(2)")
        else:
            a("s_waitcnt lgkmcnt(0)")
        for T in range(2):
            acc = vr(16 + 16 * T, 16)
            c = "0" if ks == 0 else acc
            a(f"v_mfma_f32_32x32x16_bf16 {acc}, {ar(4*ks,4)}, {vr(48+8*bsel+4*T,4)}, {c}")
        v_load(ks)
    stamp(a, 15)
    for T in range(2):
        A = 16 + 16 * T; m = 64 + T
        a(f"v_max3_f32 v{m}, v{A}, v{A+1}, v{A+2}")
        for i in range(3, 15, 2):
            a(f"v_max3_f32 v{m}, v{m}, v{A+i}, v{A+i+1}")
        a(f"v_max_f32 v{m}, v{m}, v{A+15}")
    for T in range(2):
        m = 64 + T
        a(f"""v_mov_b32 v{68+T}, v{m}
        v_permlane32_swap_b32 v{68+T}, v{m}
        v_max_f32 v{m}, v{m}, v{68+T}""")
    for T in range(2):
        A = 16 + 16 * T
        for i in range(8):
            a(f"v_pk_add_f32 {vr(A+2*i,2)}, {vr(A+2*i,2)}, v[64:65] op_sel:[0,{T}] op_sel_hi:[1,{T}] neg_lo:[0,1] neg_hi:[0,1]")
        for i in range(16):
            a(f"v_exp_f32 v{A+i}, v{A+i}")
        for i in range(4):
            a(f"v_pk_add_f32 {vr(72+2*i,2)}, {vr(A+4*i,2)}, {vr(A+4*i+2,2)}")
        a(f"""v_pk_add_f32 v[72:73], v[72:73], v[74:75]
        v_pk_add_f32 v[76:77], v[76:77], v[78:79]
        v_pk_add_f32 v[72:73], v[72:73], v[76:77]
        v_add_f32 v{66+T}, v72, v73""")
    for T in range(2):
        l = 66 + T
        a(f"""v_mov_b32 v{68+T}, v{l}
        v_permlane32_swap_b32 v{68+T}, v{l}
        v_add_f32 v{l}, v{l}, v{68+T}""")
    a(f"""v_cmp_gt_u32 vcc, 32, v1
    v_cndmask_b32 v70, v65, v64, vcc
    v_cndmask_b32 v71, v67, v66, vcc
    v_lshlrev_b32 v3, 3, v1
    s_lshl_b32 s29, s3, 9
    v_add_u32 v4, s29, v3
    ds_write_b64 v4, v[70:71] offset:{L_X}
    v_and_b32 v5, 31, v1
    v_lshlrev_b32 v5, 3, v5
    s_waitcnt lgkmcnt(0)
    s_barrier""")
    for T in range(2):
        for w in range(4):
            a(f"ds_read_b64 {vr(72+8*T+2*w,2)}, v5 offset:{L_X+512*w+256*T}")
    a("s_waitcnt lgkmcnt(0)")
    for T in range(2):
        B = 72 + 8 * T
        M = 88 + T; L = 90 + T; F = 92 + T
        a(f"""v_max3_f32 v{M}, v{B}, v{B+2}, v{B+4}
        v_max_f32 v{M}, v{M}, v{B+6}""")
        for w in range(4):
            a(f"v_sub_f32 v{B+2*w}, v{B+2*w}, v{M}")
        a(f"v_sub_f32 v{F}, v{64+T}, v{M}")
        for w in range(4):
            a(f"v_exp_f32 v{B+2*w}, v{B+2*w}")
        a(f"v_exp_f32 v{F}, v{F}")
        a(f"v_mul_f32 v{L}, v{B}, v{B+1}")
        for w in range(1, 4):
            a(f"v_fmac_f32 v{L}, v{B+2*w}, v{B+2*w+1}")
    a(f"""s_lshl_b32 s29, s3, 11
    s_add_u32 s29, s29, {L_P}
    v_add_u32 v4, s29, v2""")
    for T in range(2):
        A = 16 + 16 * T
        for i in range(8):
            a(f"v_pk_mul_f32 {vr(A+2*i,2)}, {vr(A+2*i,2)}, {vr(92,2)} op_sel:[0,{T}] op_sel_hi:[1,{T}]")
        for cs in range(2):
            D = 96 + 8 * T + 4 * cs
            a(f"""v_cvt_pk_bf16_f32 v{D}, v{A+4*cs}, v{A+4*cs+1}
            v_cvt_pk_bf16_f32 v{D+1}, v{A+4*cs+2}, v{A+4*cs+3}
            v_cvt_pk_bf16_f32 v{D+2}, v{A+8+4*cs}, v{A+8+4*cs+1}
            v_cvt_pk_bf16_f32 v{D+3}, v{A+8+4*cs+2}, v{A+8+4*cs+3}
            ds_write_b128 v4, {vr(D,4)} offset:{8192*T+1024*cs}""")
    a(f"""s_cmp_lg_u32 s3, 0
    s_cbranch_scc1 LN_noml
    v_cndmask_b32 v70, v89, v88, vcc
    v_cndmask_b32 v71, v91, v90, vcc
    v_lshlrev_b32 v3, 6, v1
    s_lshl_b32 s29, s27, 12
    s_lshl_b32 s30, s26, 3
    s_add_u32 s29, s29, s30
    s_add_u32 s29, s29, {ML}
    buffer_store_dwordx2 v[70:71], v3, s[20:23], s29 offen {SC1}
    LN_noml:
    s_waitcnt lgkmcnt(0)
    s_barrier""")
    stamp(a, 16)
    for ks in range(8):
        for T in range(2):
            a(f"ds_read_b128 {vr(16+(T*8+ks)*4,4)}, v2 offset:{L_P+8192*T+1024*ks}")
    a("s_waitcnt vmcnt(0)")
    for ks in range(8):
        a(f"s_waitcnt lgkmcnt({14-2*ks})")
        for i in range(3):
            for T in range(2):
                acc = vr(80 + (i * 2 + T) * 16, 16)
                c = "0" if ks == 0 else acc
                a(f"v_mfma_f32_32x32x16_bf16 {acc}, {ar(96+(i*8+ks)*4,4)}, {vr(16+(T*8+ks)*4,4)}, {c}")
    stamp(a, 17)
    a(f"""s_mul_i32 s29, s28, 49152
    s_mul_i32 s30, s3, 6144
    s_add_u32 s29, s29, s30
    s_add_u32 s29, s29, {OP}""")
    for T in range(2):
        for i in range(3):
            A = 80 + (i * 2 + T) * 16
            a(f"s_add_u32 s30, s29, {24576*T+2048*i}")
            for hf in range(2):
                for q in range(4):
                    a(f"v_cvt_pk_bf16_f32 v{A+8*hf+q}, v{A+8*hf+2*q}, v{A+8*hf+2*q+1}")
                a(f"buffer_store_dwordx4 {vr(A+8*hf,4)}, v2, s[20:23], s30 offen offset:{1024*hf} {SC1}")
    stamp(a, 18)
    a(f"""s_lshl_b32 s29, s27, 7
    s_add_u32 s29, s29, {FL+0x5000}
    s_lshl_b32 s30, s26, 2
    s_add_u32 s30, s30, s29
    v_mov_b32 v14, s30""")
    signal(a, "sig2", 14, "1")
    stamp(a, 19)
    a("v_lshl_add_u32 v14, v1, 2, s29")
    wait_flags(a, "w2", 14, "0xff")
    stamp(a, 20)
    a(f"""s_cmp_eq_u32 s3, 3
    s_cbranch_scc1 LN_fin
    v_and_b32 v4, 31, v1
    v_lshlrev_b32 v4, 6, v4
    s_lshl_b32 s29, s27, 12
    s_lshl_b32 s30, s65, 11
    s_add_u32 s29, s29, s30
    s_add_u32 s29, s29, {ML}""")
    for i in range(4):
        a(f"buffer_load_dwordx4 {vr(80+4*i,4)}, v4, s[20:23], s29 offen offset:{16*i} {LSC}")
    a(f"""s_mul_i32 s29, s27, {8*49152}
    s_mul_i32 s30, s65, 24576
    s_add_u32 s29, s29, s30
    s_lshl_b32 s30, s64, 11
    s_add_u32 s29, s29, s30
    s_add_u32 s29, s29, {OP}""")
    for jp in range(8):
        a(f"s_add_u32 s30, s29, {49152*jp}")
        for hf in range(2):
            a(f"buffer_load_dwordx4 {vr(16+8*jp+4*hf,4)}, v2, s[20:23], s30 offen offset:{1024*hf} {LSC}")
    a("""s_waitcnt vmcnt(16)
    v_max3_f32 v96, v80, v82, v84
    v_max3_f32 v96, v96, v86, v88
    v_max3_f32 v96, v96, v90, v92
    v_max_f32 v96, v96, v94""")
    for jj in range(8): a(f"v_sub_f32 v{80+2*jj}, v{80+2*jj}, v96")
    for jj in range(8): a(f"v_exp_f32 v{80+2*jj}, v{80+2*jj}")
    a("v_mul_f32 v97, v80, v81")
    for jj in range(1, 8): a(f"v_fmac_f32 v97, v{80+2*jj}, v{81+2*jj}")
    a("v_rcp_f32 v97, v97")
    for jj in range(8): a(f"v_mul_f32 v{80+2*jj}, v{80+2*jj}, v97")
    for jp in range(8):
        a(f"s_waitcnt vmcnt({14-2*jp})")
        for d in range(8):
            t = 120 + 2 * (d % 4)
            X = 16 + 8 * jp + d
            a(f"""v_lshlrev_b32 v{t}, 16, v{X}
            v_and_b32 v{t+1}, 0xffff0000, v{X}""")
            if jp == 0:
                a(f"v_pk_mul_f32 {vr(100+2*d,2)}, {vr(t,2)}, {vr(80+2*jp,2)} op_sel_hi:[1,0]")
            else:
                a(f"v_pk_fma_f32 {vr(100+2*d,2)}, {vr(t,2)}, {vr(80+2*jp,2)}, {vr(100+2*d,2)} op_sel_hi:[1,0,1]")
    for q in range(4):
        for hf in range(2):
            k = 100 + 4 * q + 2 * hf
            xr = 224 + 2 * q + hf
            a(f"""v_cvt_pk_bf16_f32 v120, v{k}, v{k+1}
            v_lshlrev_b32 v{k}, 16, v120
            v_and_b32 v{k+1}, 0xffff0000, v120
            v_pk_mul_f32 {vr(k,2)}, {vr(k,2)}, {vr(232+4*q+2*hf,2)}
            v_cvt_pk_bf16_f32 v120, v{k}, v{k+1}
            v_lshlrev_b32 v{k}, 16, v120
            v_and_b32 v{k+1}, 0xffff0000, v120
            v_lshlrev_b32 v122, 16, v{xr}
            v_and_b32 v123, 0xffff0000, v{xr}
            v_pk_add_f32 {vr(k,2)}, {vr(k,2)}, v[122:123]
            v_cvt_pk_bf16_f32 v{xr}, v{k}, v{k+1}""")
        a(f"buffer_store_dwordx2 {vr(224+2*q,2)}, v12, s[48:51], s66 offen offset:{16*q}")
    a(f"""LN_fin:
    s_or_b32 s29, s28, s3
    s_cmp_lg_u32 s29, 0
    s_cbranch_scc1 LN_noep
    v_lshlrev_b32 v4, 2, v1
    s_mov_b32 s68, 0x100000
    s_mov_b32 s29, 0x01010101
    LN_ep_loop:
    buffer_load_dword v5, v4, s[52:55], 0 offen sc1
    s_sub_u32 s68, s68, 1
    s_cmp_eq_u32 s68, 0
    s_cbranch_scc1 LN_ep_out
    s_waitcnt vmcnt(0)
    v_cmp_ne_u32 vcc, s29, v5
    s_nop 4
    s_cbranch_vccnz LN_ep_loop
    LN_ep_out:
    v_mov_b32 v4, {FL}
    v_mov_b32 v5, s67
    s_mov_b64 exec, 1
    buffer_store_dword v5, v4, s[20:23], 0 offen sc1
    s_mov_b64 exec, -1
    LN_noep:""")
    stamp(a, 21)
    if STAMP:
        a("s_waitcnt vmcnt(0)")
        stamp(a, 22)
    if DBGOUT:
        a("""s_or_b32 s29, s28, s3
        s_cmp_lg_u32 s29, 0
        s_cbranch_scc1 LN_exit
        v_readlane_b32 s29, v255, 0
        s_nop 3
        v_subrev_u32 v255, s29, v255
        v_lshlrev_b32 v254, 2, v1
        s_mov_b64 exec, 0xffff
        buffer_store_dword v255, v254, s[52:55], 0 offen""")
    else:
        stamp_flush(a)
    a("""LN_exit:
    s_endpgm""")

def main(out):
    a = Asm()
    a('.amdgcn_target "amdgcn-amd-amdhsa--gfx950"')
    a('.text')
    gen(a)
    txt = HEADER
    txt += f"; @launch grid=(256,1,1) block=(256,1,1) lds={L_TOT}\n"
    txt += a.text()
    txt += f"""    .fill 64, 4, 0xbf800000
LN_codeend:
.section .rodata,"a"
.p2align 6
.amdhsa_kernel {KNAME}
  .amdhsa_next_free_vgpr 448
  .amdhsa_next_free_sgpr 96
  .amdhsa_accum_offset 256
  .amdhsa_group_segment_fixed_size 0
  .amdhsa_kernarg_size 64
  .amdhsa_user_sgpr_count 2
  .amdhsa_user_sgpr_kernarg_segment_ptr 1
  .amdhsa_system_sgpr_workgroup_id_x 1
.end_amdhsa_kernel
"""
    open(out, 'w').write(txt)

if __name__ == '__main__':
    if 'stamp' in sys.argv[2:]: STAMP = True
    if 'plain' in sys.argv[2:]: LSC = ''
    if 'dbgout' in sys.argv[2:]: STAMP = True; DBGOUT = True
    main(sys.argv[1] if len(sys.argv) > 1 else 'standalone__dit_adaln_block__diffusion.s')
```

```python
import sys, struct
from asmlib import Asm, vr, sr, ar

XN  = 0x000000
WF  = 0x200000
MOD = 0x300000
TF  = 0x400000
VF  = 0x600000
ML  = 0x780000
FL  = 0x7A0000
PF  = 0x800000
DBGW = 0x1800000
WS_SIZE = 0x1C00000
CST = 384 ** -0.5 * 1.4426950408889634
KNAME = 'standalone__dit_adaln_block__diffusion_kernel'

L_W, L_H, L_GS = 0, 73728, 122880
L_P0B, L_P0R, L_P0C = 0, 36864, 61440
L_T, L_X, L_V, L_R = 0, 49152, 51200, 0
L_TOT = 149504

STAMP = False
DBGOUT = False
DBGSEL = [0,1,2,4,5,7,8,10,11,13,14,16,17,18,20,22]
SC1 = "sc1"
LSC = "sc1"
RSC = "sc1"
SPIN = 0x80000
def f2u(f): return struct.unpack('<I', struct.pack('<f', f))[0]

HEADER = """; Kernarg layout for this problem (64 bytes, ptrs only, base s[0:1]):
"""

def srd(a, d, ptr, size):
    a(f"""s_mov_b32 s{d}, s{ptr}
    s_and_b32 s{d+1}, s{ptr+1}, 0xffff
    s_mov_b32 s{d+2}, {size}
    s_mov_b32 s{d+3}, 0x00020000""")

def stamp(a, idx):
    if DBGOUT:
        if idx not in DBGSEL: return
        idx = DBGSEL.index(idx)
    if STAMP:
        a(f"""s_memrealtime s[{70+2*(idx%2)}:{71+2*(idx%2)}]
        s_waitcnt lgkmcnt(0)
        v_writelane_b32 v15, s{70+2*(idx%2)}, {idx}""")
def stamp_flush(a):
    if STAMP:
        a(f"""s_lshl_b32 s70, s2, 2
        s_add_u32 s70, s70, s3
        s_lshl_b32 s70, s70, 8
        s_add_u32 s70, s70, {DBGW}
        v_lshlrev_b32 v4, 2, v1
        buffer_store_dword v15, v4, s[20:23], s70 offen""")

def bf16r(a, dst, src):
    a(f"""v_cvt_pk_bf16_f32 v{dst}, v{src}, v{src}
    v_lshlrev_b32 v{dst}, 16, v{dst}""")

def dma_run(a, s_glob, s_lds, off_g, off_l, k, stmp=32):
    if k % 4 == 0:
        a(f"""s_add_u32 m0, s{s_lds}, {off_l + 1024*k}
        s_add_u32 s{stmp}, s{s_glob}, {off_g + 1024*k}""")
    a(f"buffer_load_dwordx4 v2, s[20:23], s{stmp} offen offset:{1024*(k%4)} {LSC} lds")

def flag_store(a, saddr):
    a(f"""v_mov_b32 v4, s{saddr}
    v_mov_b32 v5, s67
    s_mov_b64 exec, 1
    buffer_store_dword v5, v4, s[20:23], 0 offen sc1
    s_mov_b64 exec, -1""")

def poll(a, tag, vaddr, smask, cmp, sval, srdn=20, sleep=2):
    a(f"""s_mov_b32 s68, {SPIN}
    s_mov_b64 exec, {smask}
    s_branch LN_{tag}_first
    LN_{tag}_loop:
    s_sleep {sleep}
    LN_{tag}_first:
    buffer_load_dword v4, v{vaddr}, s[{srdn}:{srdn+3}], 0 offen sc1
    s_sub_u32 s68, s68, 1
    s_waitcnt vmcnt(0)
    v_cmp_{cmp}_u32 vcc, {sval}, v4
    s_cmp_eq_u32 s68, 0
    s_cbranch_scc1 LN_{tag}_out
    s_nop 2
    s_cbranch_vccnz LN_{tag}_loop
    LN_{tag}_out:
    s_mov_b64 exec, -1""")

def poll2(a, tag, vaddr, maskA, maskB, sleep=1):
    a(f"""s_mov_b32 s68, {SPIN}
    s_mov_b64 exec, {maskA | maskB:#x}
    s_branch LN_{tag}_first
    LN_{tag}_loop:
    s_sleep {sleep}
    LN_{tag}_first:
    buffer_load_dword v4, v{vaddr}, s[20:23], 0 offen sc1
    s_sub_u32 s68, s68, 1
    s_waitcnt vmcnt(0)
    v_cmp_eq_u32 vcc, -1, v4
    v_cmp_ne_u32 s[98:99], s67, v4
    s_cmp_eq_u32 s68, 0
    s_cbranch_scc1 LN_{tag}_out
    s_and_b32 s99, vcc_lo, {maskA:#x}
    s_and_b32 s98, s98, {maskB:#x}
    s_or_b32 s98, s98, s99
    s_cbranch_scc1 LN_{tag}_loop
    LN_{tag}_out:
    s_mov_b64 exec, -1""")

def gen(a):
    a(f""".globl {KNAME}
    .p2align 8
    .type {KNAME},@function
    {KNAME}:""")
    if STAMP: a("s_memrealtime s[72:73]")
    a(f"""s_cmp_ge_u32 s2, 256
    s_cbranch_scc1 LN_exit
    s_load_dwordx16 s[4:19], s[0:1], 0
    s_getpc_b64 s[30:31]
    LN_pc:
    v_and_b32 v1, 63, v0
    v_lshrrev_b32 v2, 6, v0
    s_lshr_b32 s78, s2, 3                ; t
    v_readfirstlane_b32 s3, v2
    v_lshlrev_b32 v2, 4, v1              ; lane*16
    s_lshl_b32 s32, s78, 2
    s_add_u32 s32, s32, s3
    s_and_b32 s32, s32, 31
    s_lshl_b32 s32, s32, 10
    s_min_u32 s32, s32, LN_codeend-LN_pc-1024
    s_add_u32 s30, s30, s32
    s_addc_u32 s31, s31, 0
    global_load_dword v4, v2, s[30:31]
    s_and_b32 s79, s2, 7
    s_lshr_b32 s24, s79, 2               ; b
    s_and_b32 s29, s79, 3
    s_lshl_b32 s29, s29, 2
    s_and_b32 s30, s78, 3
    s_add_u32 s25, s29, s30              ; qin
    s_lshr_b32 s26, s2, 5                ; j
    s_lshl_b32 s27, s24, 4
    s_add_u32 s27, s27, s25              ; qt
    s_lshl_b32 s28, s27, 3
    s_add_u32 s28, s28, s26              ; lid
    v_and_b32 v6, 15, v1                 ; i / r16 / n16
    v_lshrrev_b32 v7, 4, v1              ; r4 / g
    v_mul_u32_u24 v8, 768, v7
    v_lshl_add_u32 v8, v6, 4, v8""")
    for p in range(4):
        a(f"""s_lshl_b32 s{36+p}, s26, 1
        s_add_u32 s{36+p}, s{36+p}, s3
        s_add_u32 s{36+p}, s{36+p}, {4*p}
        s_and_b32 s{36+p}, s{36+p}, 15
        s_lshl_b32 s29, s27, 4
        s_add_u32 s29, s29, s{36+p}
        s_mul_i32 s{40+p}, s29, 3072""")
    a(f"""s_lshr_b32 s33, s79, 2               ; mat
    s_bfe_u32 s80, s79, 0x10001
    s_mul_i32 s34, s80, 6
    s_lshr_b32 s30, s78, 2
    s_add_u32 s34, s34, s30              ; it
    s_and_b32 s81, s79, 1
    s_lshl_b32 s35, s81, 2
    s_and_b32 s30, s78, 3
    s_add_u32 s35, s35, s30              ; n48
    ; X flag address: F0X[b*8 + qin/2][(qin%2)*8 + j]
    s_lshl_b32 s29, s24, 3
    s_lshr_b32 s30, s25, 1
    s_add_u32 s29, s29, s30
    s_lshl_b32 s29, s29, 7
    s_and_b32 s30, s25, 1
    s_lshl_b32 s30, s30, 3
    s_add_u32 s30, s30, s26
    s_lshl_b32 s30, s30, 1
    s_add_u32 s30, s30, s3
    s_lshl_b32 s30, s30, 2
    s_add_u32 s29, s29, s30
    s_add_u32 s69, s29, {FL+0x2000}
    s_lshl_b32 s29, s27, 7
    s_lshl_b32 s30, s26, 2
    s_add_u32 s29, s29, s30
    s_add_u32 s82, s29, {FL+0x3000}
    s_mul_i32 s83, s3, 9216
    s_mov_b32 s94, 2048
    s_mov_b32 s95, 2048""")
    for s in range(9):
        a(f"""v_add_u32 v9, {64*s}, v1
        v_mul_u32_u24 v{100+s}, 43691, v9
        v_lshrrev_b32 v{100+s}, 18, v{100+s}
        v_mul_u32_u24 v10, 6, v{100+s}
        v_sub_u32 v9, v9, v10
        v_lshlrev_b32 v{110+s}, 4, v9""")
    a(f"""s_lshl_b32 s30, s34, 5
    v_add_u32 v11, s30, v6
    v_mul_u32_u24 v11, 2304, v11
    v_lshl_add_u32 v11, v7, 4, v11
    s_mul_i32 s31, s3, 192
    v_add_u32 v11, s31, v11              ; A
    s_mul_i32 s30, s35, 48
    v_add_u32 v12, s30, v6
    v_mul_u32_u24 v12, 2304, v12
    v_lshl_add_u32 v12, v7, 4, v12
    v_add_u32 v12, s31, v12              ; B (qk)
    v_lshrrev_b32 v9, 2, v1
    v_min_u32 v9, 11, v9
    v_mul_u32_u24 v9, 4608, v9
    v_and_b32 v10, 3, v1
    v_lshlrev_b32 v10, 7, v10
    v_min_u32 v10, 284, v10
    v_add_u32 v13, v9, v10
    s_mul_i32 s29, s78, {12*4608}
    s_mul_i32 s30, s79, 288
    s_add_u32 s84, s29, s30
    s_waitcnt lgkmcnt(0)""")
    srd(a, 44, 4, 2048 * 768)
    def xloads(p):
        for n in range(3):
            a(f"buffer_load_dwordx4 {vr(16+12*p+4*n,4)}, v8, s[44:47], s{40+p} offen offset:{256*n}")
    xloads(0)
    srd(a, 60, 12, 384 * 4608)
    a(f"""s_cmp_lg_u32 s3, 3
    s_cbranch_scc1 LN_nopf
    buffer_load_dword v204, v13, s[60:63], s84 offen
    LN_nopf:""")
    srd(a, 20, 18, WS_SIZE)
    a(f"""v_mov_b32 v5, {FL}
    buffer_load_dword v3, v5, s[20:23], 0 offen sc1
    s_cmp_lt_u32 s78, 24
    s_cbranch_scc0 LN_r_notfold""")
    srd(a, 56, 8, 384 * 2304)
    a(f"""s_mul_i32 s30, s33, 1536
    s_add_u32 s32, s30, 36864""")
    for mt in range(2):
        for ks in range(3):
            a(f"buffer_load_dwordx4 {vr(120+(mt*3+ks)*4,4)}, v11, s[56:59], s{30 if mt==0 else 32} offen offset:{64*ks}")
    a(f"""s_cmp_eq_u32 s33, 1
    s_cbranch_scc1 LN_r_vo""")
    for nt in range(3):
        a(f"s_mov_b32 s30, {768+36864*nt}")
        for ks in range(3):
            a(f"buffer_load_dwordx4 {vr(144+(nt*3+ks)*4,4)}, v12, s[56:59], s30 offen offset:{64*ks}")
    a(f"""s_branch LN_r_foldsig
    LN_r_vo:""")
    srd(a, 60, 10, 384 * 768)
    a(f"""s_mul_i32 s30, s3, {96*768}
    s_mul_i32 s31, s35, 96
    s_add_u32 s30, s30, s31""")
    for s in range(9):
        a(f"""v_mul_u32_u24 v9, 768, v{100+s}
        v_add_u32 v9, v9, v{110+s}
        s_add_u32 m0, s83, {L_P0B+1024*s}
        buffer_load_dwordx4 v9, s[60:63], s30 offen lds""")
    a(f"""LN_r_foldsig:
    s_lshl_b32 s30, s33, 2
    s_lshr_b32 s31, s35, 1
    s_add_u32 s30, s30, s31              ; jw
    s_lshl_b32 s30, s30, 8
    s_lshl_b32 s31, s34, 1
    s_and_b32 s32, s35, 1
    s_add_u32 s31, s31, s32
    s_lshl_b32 s31, s31, 2
    s_add_u32 s30, s30, s31
    s_add_u32 s30, s30, {FL+0x1000-4096}
    v_lshlrev_b32 v14, 11, v1
    v_add_u32 v14, s30, v14
    s_mov_b64 s[74:75], 12
    s_waitcnt vmcnt(15)
    s_branch LN_r_go
    LN_r_notfold:
    s_mov_b64 s[74:75], 0
    s_mov_b32 s33, 3
    s_cmp_ge_u32 s78, 27
    s_cbranch_scc1 LN_r_none""")
    srd(a, 56, 6, 1536)
    a(f"""s_sub_u32 s35, s78, 24
    s_mul_i32 s30, s79, 3
    s_add_u32 s35, s35, s30
    s_lshl_b32 s30, s35, 2
    s_add_u32 s30, s30, {FL+0x1000+96-512}
    v_lshlrev_b32 v14, 8, v1
    v_add_u32 v14, s30, v14
    s_mov_b64 s[74:75], 0x3fffc
    s_mov_b32 s33, 2
    v_lshlrev_b32 v9, 2, v1
    s_mul_i32 s30, s3, 192
    s_add_u32 s31, s30, 768
    buffer_load_dword v12, v9, s[56:59], s30 offen
    buffer_load_dword v13, v9, s[56:59], s31 offen
    s_mul_i32 s30, s3, {96*4608}
    s_mul_i32 s31, s35, 96
    s_add_u32 s30, s30, s31
    s_waitcnt vmcnt(0)""")
    for s in range(9):
        a(f"""v_mul_u32_u24 v9, 4608, v{100+s}
        v_add_u32 v9, v9, v{110+s}
        s_add_u32 m0, s83, {L_P0B+1024*s}
        buffer_load_dwordx4 v9, s[60:63], s30 offen lds""")
    a("""s_branch LN_r_go
    LN_r_none:
    s_waitcnt vmcnt(0)
    LN_r_go:""")
    srd(a, 48, 14, 2048 * 768)
    srd(a, 52, 16, 256)
    if STAMP:
        a("""v_mov_b32 v15, 0
        v_writelane_b32 v15, s72, 0""")
    stamp(a, 2)
    def ln_pass(p, hooks=()):
        X = 16 + 12 * p
        hooks = list(hooks)
        def hk():
            if hooks: hooks.pop(0)()
        for i in range(12):
            a(f"v_lshlrev_b32 v{64+2*i}, 16, v{X+i}")
            a(f"v_and_b32 v{65+2*i}, 0xffff0000, v{X+i}")
            if i % 4 == 3: hk()
        for i in range(6):
            a(f"v_pk_add_f32 {vr(88+2*i,2)}, {vr(64+4*i,2)}, {vr(66+4*i,2)}")
        for i in range(3):
            a(f"v_pk_add_f32 {vr(88+2*i,2)}, {vr(88+2*i,2)}, {vr(94+2*i,2)}")
        a("""v_pk_add_f32 v[88:89], v[88:89], v[90:91]
        v_pk_add_f32 v[88:89], v[88:89], v[92:93]
        v_add_f32 v88, v88, v89""")
        hk()
        for ror in (8, 4, 2, 1):
            a(f"v_add_f32_dpp v88, v88, v88 row_ror:{ror} row_mask:0xf bank_mask:0xf")
        a(f"v_mul_f32 v88, {f2u(1/384):#x}, v88")
        bf16r(a, 89, 88)
        for i in range(12):
            a(f"v_pk_add_f32 {vr(64+2*i,2)}, {vr(64+2*i,2)}, v[88:89] op_sel:[0,1] op_sel_hi:[1,1] neg_lo:[0,1] neg_hi:[0,1]")
            if i % 6 == 5: hk()
        a("""v_pk_mul_f32 v[90:91], v[64:65], v[64:65]
        v_pk_mul_f32 v[92:93], v[66:67], v[66:67]""")
        for i in range(2, 12):
            acc = 90 + 2 * (i % 2)
            a(f"v_pk_fma_f32 {vr(acc,2)}, {vr(64+2*i,2)}, {vr(64+2*i,2)}, {vr(acc,2)}")
        a("""v_pk_add_f32 v[90:91], v[90:91], v[92:93]
        v_sub_f32 v88, v88, v89
        v_add_f32 v90, v90, v91""")
        hk()
        for ror in (8, 4, 2, 1):
            a(f"v_add_f32_dpp v90, v90, v90 row_ror:{ror} row_mask:0xf bank_mask:0xf")
        a(f"""v_mul_f32 v90, {f2u(1/384):#x}, v90
        v_fma_f32 v90, -v88, v88, v90
        v_max_f32 v90, 0, v90""")
        bf16r(a, 90, 90)
        a(f"v_add_f32 v90, {f2u(1e-5):#x}, v90")
        bf16r(a, 90, 90)
        a("v_sqrt_f32 v90, v90")
        bf16r(a, 90, 90)
        a("v_rcp_f32 v90, v90")
        hk()
        for i in range(12):
            a(f"v_pk_mul_f32 {vr(64+2*i,2)}, {vr(64+2*i,2)}, v[90:91] op_sel_hi:[1,0]")
            if i % 6 == 5: hk()
        for i in range(12):
            a(f"v_cvt_pk_bf16_f32 v{X+i}, v{64+2*i}, v{65+2*i}")
            if i % 6 == 5: hk()
        assert not hooks
    ln_pass(0)
    a(f"""s_cmp_ge_u32 s3, 2
    s_cbranch_scc1 LN_nopub
    v_lshrrev_b32 v9, 1, v6
    v_lshlrev_b32 v9, 10, v9
    v_and_b32 v10, 1, v6
    v_lshl_add_u32 v9, v10, 9, v9
    v_lshl_add_u32 v9, v7, 4, v9
    s_lshr_b32 s29, s36, 3
    s_lshl_b32 s30, s27, 1
    s_add_u32 s29, s29, s30
    s_mul_i32 s29, s29, 24576
    s_and_b32 s30, s36, 7
    s_lshl_b32 s30, s30, 6
    s_add_u32 s29, s29, s30
    s_add_u32 s29, s29, {XN}""")
    for n in range(3):
        a(f"""s_add_u32 s30, s29, {8192*n}
        buffer_store_dwordx4 {vr(16+4*n,4)}, v9, s[20:23], s30 offen {SC1}""")
    a("LN_nopub:")
    a(f"""v_readfirstlane_b32 s67, v3
    s_mul_i32 s67, s67, 0x9E3779B1
    s_add_u32 s67, s67, 0x7F4A7C15
""")
    stamp(a, 3)
    a("""s_cmp_eq_u32 s33, 3
    s_cbranch_scc1 LN_p0_x
    s_cmp_eq_u32 s33, 0
    s_cbranch_scc0 LN_p0_notqk
    s_waitcnt vmcnt(3)
    s_cmp_lt_u32 s3, 2
    s_cbranch_scc1 LN_p0_mm
    s_waitcnt vmcnt(0)
    s_branch LN_p0_mm
    LN_p0_notqk:
    s_cmp_eq_u32 s33, 1
    s_cbranch_scc1 LN_p0_tr""")
    for i in range(24):
        a(f"v_mov_b32 v{120+i}, 0")
    a("""v_lshlrev_b32 v64, 16, v12
    v_and_b32 v65, 0xffff0000, v12
    v_lshlrev_b32 v66, 16, v13
    v_and_b32 v67, 0xffff0000, v13""")
    for i in range(4): a(f"v_mul_f32 v{68+i}, 0xbfb8aa3b, v{64+i}")
    for i in range(4): a(f"v_exp_f32 v{68+i}, v{68+i}")
    for i in range(4): a(f"v_add_f32 v{68+i}, 1.0, v{68+i}")
    for i in range(4): a(f"v_rcp_f32 v{68+i}, v{68+i}")
    for i in range(4): a(f"v_mul_f32 v{64+i}, v{64+i}, v{68+i}")
    a(f"""v_cvt_pk_bf16_f32 v12, v64, v65
    v_cvt_pk_bf16_f32 v13, v66, v67
    s_lshl_b32 s30, s3, 9
    s_add_u32 s30, s30, {L_P0C}
    v_lshl_add_u32 v9, v1, 2, s30
    ds_write_b32 v9, v12
    ds_write_b32 v9, v13 offset:256
    v_lshlrev_b32 v9, 8, v6
    v_lshl_add_u32 v9, v7, 4, v9
    v_add_u32 v9, s30, v9
    s_mov_b32 s30, 0x00030003
    s_mov_b32 s31, 0x00030003
    s_waitcnt lgkmcnt(0)
    s_mov_b64 exec, s[30:31]""")
    for ks in range(3):
        a(f"ds_read_b128 {vr(120+ks*4,4)}, v9 offset:{64*ks}")
    a("""s_mov_b64 exec, -1
    LN_p0_tr:
    v_lshrrev_b32 v9, 2, v6
    v_lshl_add_u32 v9, v7, 3, v9
    v_mul_u32_u24 v9, 96, v9
    v_and_b32 v10, 3, v6
    v_lshl_add_u32 v9, v10, 3, v9
    v_add_u32 v9, s83, v9
    s_waitcnt vmcnt(3)
    s_cmp_lt_u32 s3, 2
    s_cbranch_scc1 LN_p0_tr2
    s_waitcnt vmcnt(0)
    LN_p0_tr2:""")
    for ks in range(3):
        for nt in range(3):
            for jj in range(2):
                a(f"ds_read_b64_tr_b16 {vr(144+(nt*3+ks)*4+2*jj,2)}, v9 offset:{L_P0B+(32*ks+4*jj)*96+32*nt}")
    a("""s_waitcnt lgkmcnt(0)
    LN_p0_mm:""")
    for ks in range(3):
        for nt in range(3):
            for mt in range(2):
                acc = vr(180 + (nt * 2 + mt) * 4, 4)
                c = "0" if ks == 0 else acc
                a(f"v_mfma_f32_16x16x32_bf16 {acc}, {vr(120+(mt*3+ks)*4,4)}, {vr(144+(nt*3+ks)*4,4)}, {c}")
    a(f"""s_mul_i32 s30, s3, 6144
    v_add_u32 v9, s30, v2""")
    for t in range(6):
        a(f"ds_write_b128 v9, {vr(180+4*t,4)} offset:{L_P0R+1024*t}")
    a(f"""LN_p0_x:
    s_cmp_ge_u32 s3, 2
    s_cbranch_scc1 LN_p0_nox
    s_waitcnt vmcnt(0)""")
    flag_store(a, 69)
    a("""LN_p0_nox:
    s_cmp_eq_u32 s33, 3
    s_cbranch_scc1 LN_p0_skipbar
    s_waitcnt lgkmcnt(0)
    s_barrier
    LN_p0_skipbar:""")
    for p in range(1, 4): xloads(p)
    a(f"""s_lshl_b32 s30, s3, 11
    v_add_u32 v9, s30, v2
    s_cmp_eq_u32 s33, 3
    s_cbranch_scc1 LN_p0_end
    s_cmp_eq_u32 s3, 3
    s_cbranch_scc1 LN_p0_end""")
    for w in range(4):
        for mt in range(2):
            a(f"ds_read_b128 {vr(120+(w*2+mt)*4,4)}, v9 offset:{L_P0R+6144*w+1024*mt}")
    a(f"""s_lshl_b32 s30, s33, 2
    s_lshr_b32 s31, s35, 1
    s_add_u32 s30, s30, s31
    s_mul_i32 s30, s30, 12
    s_add_u32 s30, s30, s34
    s_mul_i32 s30, s30, 6
    s_and_b32 s31, s35, 1
    s_mul_i32 s31, s31, 3
    s_add_u32 s30, s30, s31
    s_add_u32 s30, s30, s3
    s_lshl_b32 s30, s30, 10
    s_add_u32 s30, s30, {WF}
    v_lshrrev_b32 v9, 1, v7
    v_lshlrev_b32 v9, 8, v9
    v_lshl_add_u32 v9, v6, 4, v9
    v_and_b32 v10, 1, v7
    v_lshl_add_u32 v9, v10, 3, v9
    s_waitcnt lgkmcnt(0)""")
    for i in range(4):
        a(f"v_pk_add_f32 {vr(120+2*i,2)}, {vr(120+2*i,2)}, {vr(128+2*i,2)}")
        a(f"v_pk_add_f32 {vr(136+2*i,2)}, {vr(136+2*i,2)}, {vr(144+2*i,2)}")
    for i in range(4):
        a(f"v_pk_add_f32 {vr(120+2*i,2)}, {vr(120+2*i,2)}, {vr(136+2*i,2)}")
    a(f"""s_cmp_eq_u32 s33, 2
    s_cbranch_scc1 LN_p0_modfin
    v_cvt_pk_bf16_f32 v120, v120, v121
    v_cvt_pk_bf16_f32 v121, v122, v123
    v_cvt_pk_bf16_f32 v122, v124, v125
    v_cvt_pk_bf16_f32 v123, v126, v127
    buffer_store_dwordx2 v[120:121], v9, s[20:23], s30 offen {SC1}
    buffer_store_dwordx2 v[122:123], v9, s[20:23], s30 offen offset:512 {SC1}
    s_branch LN_p0_end
    LN_p0_modfin:
    v_cvt_pk_bf16_f32 v122, v120, v121
    v_lshlrev_b32 v120, 16, v122
    v_and_b32 v121, 0xffff0000, v122
    s_lshr_b32 s30, s35, 3               ; sec
    s_and_b32 s31, s35, 7
    s_mul_i32 s31, s31, 48
    s_lshl_b32 s32, s3, 4
    s_add_u32 s31, s31, s32
    v_add_u32 v9, s31, v1                ; d
    v_lshrrev_b32 v11, 3, v9
    v_and_b32 v10, 7, v9
    v_lshlrev_b32 v11, 6, v11
    v_lshl_add_u32 v10, v10, 2, v11
    v_lshlrev_b32 v9, 2, v9
    s_mov_b32 s32, {MOD}
    s_mov_b64 exec, 0xffff
    s_cmp_eq_u32 s30, 1
    s_cbranch_scc1 LN_p0_scale
    s_cmp_eq_u32 s30, 2
    s_cbranch_scc1 LN_p0_gate
    buffer_store_dword v120, v10, s[20:23], s32 offen offset:32 {SC1}
    buffer_store_dword v121, v10, s[20:23], s32 offen offset:{3072+32} {SC1}
    s_branch LN_p0_modend
    LN_p0_scale:
    v_add_f32 v120, 1.0, v120
    v_add_f32 v121, 1.0, v121
    v_cvt_pk_bf16_f32 v122, v120, v121
    v_lshlrev_b32 v120, 16, v122
    v_and_b32 v121, 0xffff0000, v122
    v_mul_f32 v122, {f2u(CST):#x}, v120
    v_mul_f32 v123, {f2u(CST):#x}, v121
    s_mov_b32 s31, {MOD+8192}
    buffer_store_dword v120, v10, s[20:23], s32 offen {SC1}
    buffer_store_dword v121, v10, s[20:23], s32 offen offset:3072 {SC1}
    buffer_store_dword v122, v9, s[20:23], s31 offen {SC1}
    buffer_store_dword v123, v9, s[20:23], s31 offen offset:1536 {SC1}
    s_branch LN_p0_modend
    LN_p0_gate:
    s_mov_b32 s31, {MOD+12288}
    buffer_store_dword v120, v9, s[20:23], s31 offen {SC1}
    buffer_store_dword v121, v9, s[20:23], s31 offen offset:1536 {SC1}
    LN_p0_modend:
    s_mov_b64 exec, -1
    LN_p0_end:""")
    stamp(a, 4)
    a(f"""s_waitcnt vmcnt(0) lgkmcnt(0)
    s_barrier
    s_cmp_lg_u32 s3, 0
    s_cbranch_scc1 LN_sig0_skip
    v_mov_b32 v5, s67
    v_mov_b32 v4, s28
    v_mov_b32 v9, 1
    s_cmp_eq_u32 s33, 3
    s_cbranch_scc1 LN_sig0_nf
    s_mov_b64 exec, s[74:75]
    buffer_store_dword v5, v14, s[20:23], 0 offen sc1
    LN_sig0_nf:
    s_mov_b64 exec, 1
    buffer_store_byte v9, v4, s[52:55], 0 offen sc1
    s_mov_b64 exec, -1
    LN_sig0_skip:""")
    stamp(a, 5)
    a(f"""s_lshl_b32 s29, s24, 5
    s_lshl_b32 s30, s26, 2
    s_add_u32 s29, s29, s30
    s_add_u32 s29, s29, s3
    s_mul_i32 s29, s29, 24576
    s_add_u32 s76, s29, {XN}
    s_lshl_b32 s29, s24, 3
    s_add_u32 s29, s29, s26
    s_lshl_b32 s29, s29, 7
    s_add_u32 s29, s29, {FL+0x2000}
    v_lshl_add_u32 v14, v1, 2, s29""")
    def xnk_load(ks):
        if ks % 4 == 0:
            a(f"s_add_u32 s77, s76, {1024*ks}")
        a(f"buffer_load_dwordx4 {ar(4*ks,4)}, v2, s[20:23], s77 offen offset:{1024*(ks%4)} {LSC}")
    a(f"""v_mov_b32 v64, -1
    v_mov_b32 v65, -1
    v_mov_b32 v66, -1
    v_mov_b32 v67, -1
    s_lshl_b32 s29, s24, 6
    s_lshl_b32 s30, s25, 2
    s_add_u32 s29, s29, s30
    s_lshl_b32 s97, s29, 15
    s_add_u32 s97, s97, {PF}
    s_lshl_b32 s30, s26, 2
    s_add_u32 s30, s30, s3
    s_lshl_b32 s30, s30, 10
    s_add_u32 s96, s97, s30              ; + kstep (4j+w)""")
    for i in range(4):
        a(f"""s_add_u32 s30, s96, {32768*i}
        buffer_store_dwordx4 v[64:67], v2, s[20:23], s30 offen {RSC}""")
    a(f"""s_cmp_lt_u32 s26, 4
    s_cbranch_scc1 LN_poisT
    ; V' blocks of this wave: dtile16 = b*24 + 6(j-4) + 3(w/2) + 0..2, kstep = 2qin + w%2
    s_sub_u32 s29, s26, 4
    s_mul_i32 s30, s29, 6
    s_lshr_b32 s31, s3, 1
    s_mul_i32 s31, s31, 3
    s_add_u32 s30, s30, s31
    s_mul_i32 s31, s24, 24
    s_add_u32 s30, s30, s31
    s_lshl_b32 s30, s30, 5
    s_lshl_b32 s31, s25, 1
    s_add_u32 s30, s30, s31
    s_and_b32 s31, s3, 1
    s_add_u32 s30, s30, s31
    s_lshl_b32 s30, s30, 10
    s_add_u32 s65, s30, {VF}
    s_lshl_b32 s30, s24, 2
    s_add_u32 s29, s29, s30
    s_lshl_b32 s29, s29, 7
    s_lshl_b32 s30, s25, 2
    s_add_u32 s29, s29, s30
    s_add_u32 s64, s29, {FL+0x4000}""")
    for i in range(3):
        a(f"""s_add_u32 s30, s65, {32768*i}
        buffer_store_dwordx4 v[64:67], v2, s[20:23], s30 offen {SC1}""")
    a(f"""s_branch LN_poisE
    LN_poisT:
    s_lshr_b32 s29, s3, 1
    s_lshl_b32 s30, s27, 1
    s_add_u32 s29, s29, s30
    s_mul_i32 s29, s29, 24
    s_mul_i32 s30, s26, 6
    s_add_u32 s29, s29, s30
    s_and_b32 s30, s3, 1
    s_mul_i32 s30, s30, 3
    s_add_u32 s29, s29, s30
    s_lshl_b32 s29, s29, 10
    s_add_u32 s29, s29, {TF}""")
    for i in range(3):
        a(f"buffer_store_dwordx4 v[64:67], v2, s[20:23], s29 offen offset:{1024*i} {RSC}")
    a("LN_poisE:")
    ln_pass(1)
    ln_pass(2)
    ln_pass(3)
    a("s_mov_b32 s90, -1\n s_mov_b32 s91, 0")
    poll(a, "wx", 14, "s[90:91]", "ne", "s67", sleep=4)
    stamp(a, 12)
    a("""s_cmp_eq_u32 s3, 3
    s_cbranch_scc1 LN_noxk""")
    for k in range(24): xnk_load(k)
    a("LN_noxk:")
    a(f"""s_and_b32 s34, s3, 1
    s_lshr_b32 s35, s3, 1
    s_mul_i32 s84, s24, 3072
    s_add_u32 s84, s84, {MOD}
    s_mul_i32 s85, s3, 3072
    s_add_u32 s85, s85, {L_GS}
    s_mul_i32 s86, s26, 73728
    s_mul_i32 s87, s3, 6144
    s_add_u32 s86, s86, s87
    s_add_u32 s86, s86, {WF}
    s_add_u32 s87, s87, {L_W}
    s_and_b32 s29, s26, 3
    s_mul_i32 s29, s29, 96
    s_mul_i32 s30, s35, 48
    s_add_u32 s29, s29, s30
    s_mul_i32 s30, s24, 384
    s_add_u32 s29, s29, s30
    s_lshl_b32 s29, s29, 2
    s_add_u32 s88, s29, {MOD+8192}       ; gc
    v_lshlrev_b32 v12, 4, v7
    v_lshlrev_b32 v13, 6, v6
    v_add_u32 v13, s85, v13
    v_lshrrev_b32 v9, 2, v6
    v_lshlrev_b32 v9, 10, v9
    v_and_b32 v10, 3, v6
    v_lshl_add_u32 v9, v10, 8, v9
    v_and_b32 v10, 7, v6
    v_xor_b32 v10, v10, v7
    v_lshl_add_u32 v11, v10, 4, v9
    s_lshl_b32 s29, s24, 3
    s_add_u32 s29, s29, s26
    s_lshl_b32 s29, s29, 8
    s_add_u32 s29, s29, {FL+0x1000}
    v_lshl_add_u32 v14, v1, 2, s29
    s_mov_b32 s90, -1
    s_mov_b32 s91, 0x0000ffff""")
    stamp(a, 6)
    a("""s_cmp_lg_u32 s3, 3
    s_cbranch_scc1 LN_w0_done""")
    poll(a, "w0", 14, "s[90:91]", "ne", "s67")
    a("""LN_w0_done:
    s_barrier""")
    stamp(a, 7)
    RFLAG = True
    a("""s_cmp_lg_u32 s3, 3
    s_cbranch_scc1 LN_norf""")
    flag_store(a, 82)
    a("""s_cmp_lt_u32 s26, 4
    s_cbranch_scc1 LN_norf""")
    flag_store(a, 64)
    a("LN_norf:")
    for i in range(3): dma_run(a, 84, 85, 0, 0, i)
    def wdma(k):
        g, i = k // 6, k % 6
        dma_run(a, 86, 87, 24576 * g, 24576 * g, i)
    for k in range(6): wdma(k)
    a("s_waitcnt vmcnt(6)")
    for n in range(3):
        for q in range(4):
            a(f"ds_read_b128 {vr(64+16*n+4*q,4)}, v13 offset:{1024*n+16*q}")
    stamp(a, 8)
    for p in range(4):
        a(f"""s_and_b32 s29, s{36+p}, 3
        s_lshl_b32 s29, s29, 6
        s_lshr_b32 s30, s{36+p}, 2
        s_mul_i32 s30, s30, 12288
        s_add_u32 s30, s30, {L_H}
        v_xor_b32 v10, s29, v11
        v_add_u32 v10, s30, v10""")
        for n in range(3):
            X = 16 + 12 * p + 4 * n
            wdma(6 + 3 * p + n)
            if p == 0:
                a(f"s_waitcnt lgkmcnt({8-4*n+n})")
            for d in range(4):
                t = 124 + 2 * (d % 2)
                a(f"""v_lshlrev_b32 v{t}, 16, v{X+d}
                v_and_b32 v{t+1}, 0xffff0000, v{X+d}
                v_pk_fma_f32 {vr(t,2)}, {vr(t,2)}, {vr(64+16*n+2*d,2)}, {vr(64+16*n+8+2*d,2)}
                v_cvt_pk_bf16_f32 v{X+d}, v{t}, v{t+1}""")
            a(f"ds_write_b128 v10, {vr(X,4)} offset:{4096*n}")
    for dt in range(3):
        a(f"buffer_load_dwordx4 {vr(112+4*dt,4)}, v12, s[20:23], s88 offen offset:{64*dt} {LSC}")
    stamp(a, 9)
    a(f"""v_xor_b32 v9, v6, v7
    v_lshlrev_b32 v9, 4, v9
    v_lshl_add_u32 v9, v7, 8, v9
    s_mul_i32 s29, s34, 24576
    s_add_u32 s29, s29, {L_H}
    v_add_u32 v8, s29, v9
    v_xor_b32 v9, 64, v8
    s_mul_i32 s29, s35, 3072
    s_add_u32 s29, s29, {L_W}
    v_add_u32 v10, s29, v2
    v_add_u32 v11, 36864, v10
    s_lshl_b32 s29, s27, 7
    s_add_u32 s29, s29, {FL+0x3000}
    v_and_b32 v14, 7, v1
    v_lshl_add_u32 v14, v14, 2, s29
    s_lshl_b32 s29, s24, 2
    s_lshr_b32 s30, s26, 1
    s_add_u32 s29, s29, s30
    s_lshl_b32 s29, s29, 7
    s_add_u32 s29, s29, {FL+0x4000}
    v_lshl_add_u32 v13, v6, 2, s29
    v_cmp_gt_u32 vcc, 16, v1
    s_nop 1
    v_cndmask_b32 v14, v13, v14, vcc
    s_waitcnt vmcnt(15) lgkmcnt(0)
    s_barrier""")
    stamp(a, 10)
    a("""s_cmp_ge_u32 s26, 4
    s_cbranch_scc1 LN_g_v""")
    def mm(is_v):
        NB = 3
        def rd(ks):
            base = 16 + 20 * (ks % NB)
            for rt in range(2):
                a(f"ds_read_b128 {vr(base+4*rt,4)}, v{8+(ks%2)} offset:{(rt*12+ks)*1024}")
            for nt in range(3):
                a(f"ds_read_b128 {vr(base+8+4*nt,4)}, v{10 if ks < 6 else 11} offset:{(ks%6)*6144+nt*1024}")
        rd(0); rd(1)
        for ks in range(12):
            if ks + 2 < 12:
                if (ks + 2) % 4 == 0:
                    g = (ks + 2) // 4
                    a(f"s_waitcnt vmcnt({(2-g)*9})")
                    a("s_barrier")
                    if g == 2:
                        a("buffer_load_dword v3, v14, s[20:23], 0 offen sc1")
                rd(ks + 2)
                a("s_waitcnt lgkmcnt(10)")
            elif ks + 1 < 12:
                a("s_waitcnt lgkmcnt(5)")
            else:
                a("s_waitcnt lgkmcnt(0)")
            base = 16 + 20 * (ks % NB)
            for nt in range(3):
                for rt in range(2):
                    acc = vr(80 + 8 * nt + 4 * rt, 4)
                    c = "0" if ks == 0 else acc
                    H = vr(base + 4 * rt, 4); W = vr(base + 8 + 4 * nt, 4)
                    if is_v: a(f"v_mfma_f32_16x16x32_bf16 {acc}, {H}, {W}, {c}")
                    else:    a(f"v_mfma_f32_16x16x32_bf16 {acc}, {W}, {H}, {c}")
    mm(False)
    a(f"""v_lshrrev_b32 v10, 1, v7
    v_lshlrev_b32 v10, 9, v10
    v_lshl_add_u32 v10, v6, 4, v10
    v_and_b32 v11, 1, v7
    v_lshl_add_u32 v10, v11, 3, v10
    s_lshl_b32 s33, s27, 1
    s_add_u32 s33, s33, s34
    s_mul_i32 s33, s33, 24
    s_mul_i32 s29, s26, 6
    s_mul_i32 s30, s35, 3
    s_add_u32 s29, s29, s30
    s_add_u32 s33, s33, s29
    s_lshl_b32 s33, s33, 10
    s_add_u32 s33, s33, {TF}""")
    for dt in range(3):
        for rt in range(2):
            acc = 80 + 8 * dt + 4 * rt
            a(f"""v_pk_mul_f32 {vr(acc,2)}, {vr(acc,2)}, {vr(112+4*dt,2)}
            v_pk_mul_f32 {vr(acc+2,2)}, {vr(acc+2,2)}, {vr(114+4*dt,2)}
            v_cvt_pk_bf16_f32 v{acc}, v{acc}, v{acc+1}
            v_cvt_pk_bf16_f32 v{acc+1}, v{acc+2}, v{acc+3}
            buffer_store_dwordx2 {vr(acc,2)}, v10, s[20:23], s33 offen offset:{1024*dt+256*rt} {RSC}""")
    a("""s_branch LN_g_done
    LN_g_v:""")
    mm(True)
    for dt in range(3):
        acc = 80 + 8 * dt
        a(f"""v_cvt_pk_bf16_f32 v{acc}, v{acc}, v{acc+1}
        v_cvt_pk_bf16_f32 v{acc+1}, v{acc+2}, v{acc+3}
        v_cvt_pk_bf16_f32 v{acc+2}, v{acc+4}, v{acc+5}
        v_cvt_pk_bf16_f32 v{acc+3}, v{acc+6}, v{acc+7}
        s_add_u32 s31, s65, {32768*dt}
        buffer_store_dwordx4 {vr(acc,4)}, v2, s[20:23], s31 offen {SC1}""")
    a("LN_g_done:")
    stamp(a, 11)
    a("""s_cmp_lg_u32 s3, 3
    s_cbranch_scc1 LN_noxk2""")
    for k in range(24): xnk_load(k)
    a("LN_noxk2:")
    a(f"""s_mul_i32 s84, s27, 49152
    s_mul_i32 s85, s3, 3072
    s_add_u32 s84, s84, s85
    s_add_u32 s84, s84, {TF}
    s_add_u32 s85, s85, {L_T}
    s_mul_i32 s29, s24, 24
    s_mul_i32 s30, s26, 3
    s_add_u32 s29, s29, s30
    s_lshl_b32 s29, s29, 15
    s_mul_i32 s87, s3, 24576
    s_add_u32 s86, s29, s87
    s_add_u32 s86, s86, {VF}
    s_add_u32 s87, s87, {L_V}
    s_cmp_lg_u32 s3, 0
    s_cbranch_scc1 LN_w1_done
    ; T' samples: lane L<16: jp=L/4, rh=L%2, ch=(L/2)%2 ; V' flags F1V[b*4 + j/2][lane]
    v_and_b32 v4, 1, v1
    v_bfe_u32 v5, v1, 1, 1
    v_bfe_u32 v9, v1, 2, 2
    v_mul_u32_u24 v10, 6, v9
    v_mad_u32_u24 v10, v5, 3, v10
    v_add_u32 v10, 2, v10
    v_mad_u32_u24 v11, v4, 24, v10
    v_lshlrev_b32 v11, 10, v11
    s_mul_i32 s29, s27, 49152
    s_add_u32 s29, s29, {TF+256}
    v_add_u32 v11, s29, v11
    s_add_u32 s29, s86, {65536+1008}
    v_lshl_add_u32 v12, v1, 10, s29
    s_waitcnt vmcnt(3)
    v_cmp_ne_u32 vcc, s67, v3
    s_nop 4
    s_cbranch_vccz LN_w1_rowok""")
    poll(a, "w1r", 14, "-1", "ne", "s67")
    a("LN_w1_rowok:")
    poll(a, "w1", 11, "0xffff", "eq", "-1", sleep=1)
    a("""LN_w1_done:
    LN_s_retry:
    s_barrier""")
    stamp(a, 13)
    for g in range(2):
        for T in range(2):
            for i in range(3):
                off = T * 24576 + g * 12288
                dma_run(a, 84, 85, off, off, i)
    a("""s_cmp_lg_u32 s3, 0
    s_cbranch_scc1 LN_w1v_done""")
    a("s_mov_b32 s90, -1\n s_mov_b32 s91, 0")
    poll(a, "w1v", 12, "s[90:91]", "eq", "-1", sleep=1)
    a("""s_waitcnt vmcnt(0)
    LN_w1v_done:
    s_waitcnt vmcnt(6)
    s_barrier""")
    stamp(a, 14)
    NB = 3
    def rd(ks):
        for T in range(2):
            a(f"ds_read_b128 {vr(48+8*(ks%NB)+4*T,4)}, v2 offset:{L_T+(T*24+ks)*1024}")
    rd(0); rd(1)
    nv = 0
    for ks in range(24):
        if ks + 2 < 24:
            if ks + 2 == 12:
                a(f"s_waitcnt vmcnt({nv})")
                a("s_barrier")
            rd(ks + 2)
            a("s_waitcnt lgkmcnt(4)")
        elif ks + 1 < 24:
            a("s_waitcnt lgkmcnt(2)")
        else:
            a("s_waitcnt lgkmcnt(0)")
        for T in range(2):
            acc = vr(16 + 16 * T, 16)
            c = "0" if ks == 0 else acc
            B = 48 + 8 * (ks % NB) + 4 * T
            a(f"v_mfma_f32_32x32x16_bf16 {acc}, {ar(4*ks,4)}, {vr(B,4)}, {c}")
        if ks % 3 != 2:
            dma_run(a, 86, 87, 0, 0, nv); nv += 1
    stamp(a, 15)
    def vd():
        nonlocal nv
        dma_run(a, 86, 87, 0, 0, nv); nv += 1
    for T in range(2):
        A = 16 + 16 * T; m = 64 + T
        a(f"v_max3_f32 v{m}, v{A}, v{A+1}, v{A+2}")
        for i in range(3, 15, 2):
            a(f"v_max3_f32 v{m}, v{m}, v{A+i}, v{A+i+1}")
        a(f"v_max_f32 v{m}, v{m}, v{A+15}")
        vd(); vd()
    for T in range(2):
        m = 64 + T
        a(f"""v_mov_b32 v{68+T}, v{m}
        v_permlane32_swap_b32 v{68+T}, v{m}
        v_max_f32 v{m}, v{m}, v{68+T}""")
    for T in range(2):
        A = 16 + 16 * T
        for i in range(8):
            a(f"v_pk_add_f32 {vr(A+2*i,2)}, {vr(A+2*i,2)}, v[64:65] op_sel:[0,{T}] op_sel_hi:[1,{T}] neg_lo:[0,1] neg_hi:[0,1]")
        vd()
        for i in range(16):
            a(f"v_exp_f32 v{A+i}, v{A+i}")
        vd()
        for i in range(4):
            a(f"v_pk_add_f32 {vr(72+2*i,2)}, {vr(A+4*i,2)}, {vr(A+4*i+2,2)}")
        a(f"""v_pk_add_f32 v[72:73], v[72:73], v[74:75]
        v_pk_add_f32 v[76:77], v[76:77], v[78:79]
        v_pk_add_f32 v[72:73], v[72:73], v[76:77]
        v_add_f32 v{66+T}, v72, v73""")
    assert nv == 24
    for T in range(2):
        l = 66 + T
        a(f"""v_mov_b32 v{68+T}, v{l}
        v_permlane32_swap_b32 v{68+T}, v{l}
        v_add_f32 v{l}, v{l}, v{68+T}""")
    a(f"""v_cmp_u_f32 vcc, v66, v67
    v_cmp_gt_u32 s[90:91], 32, v1
    s_nop 3
    s_cbranch_vccnz LN_s_retry0
    LN_s_cont:
    v_cndmask_b32 v70, v65, v64, s[90:91]
    v_cndmask_b32 v71, v67, v66, s[90:91]
    v_lshlrev_b32 v3, 3, v1
    s_lshl_b32 s29, s3, 9
    v_add_u32 v4, s29, v3
    ds_write_b64 v4, v[70:71] offset:{L_X}
    v_and_b32 v5, 31, v1
    v_lshlrev_b32 v5, 3, v5
    s_waitcnt lgkmcnt(0)
    s_barrier""")
    for T in range(2):
        for w in range(4):
            a(f"ds_read_b64 {vr(72+8*T+2*w,2)}, v5 offset:{L_X+512*w+256*T}")
    a(f"""v_bfe_u32 v9, v1, 4, 1
    v_lshlrev_b32 v9, 15, v9
    v_lshrrev_b32 v10, 5, v1
    v_lshl_add_u32 v9, v10, 8, v9
    v_lshl_add_u32 v9, v6, 4, v9
    s_waitcnt lgkmcnt(0)""")
    for T in range(2):
        B = 72 + 8 * T
        M = 88 + T; L = 90 + T; F = 92 + T
        a(f"""v_max3_f32 v{M}, v{B}, v{B+2}, v{B+4}
        v_max_f32 v{M}, v{M}, v{B+6}""")
        for w in range(4):
            a(f"v_sub_f32 v{B+2*w}, v{B+2*w}, v{M}")
        a(f"v_sub_f32 v{F}, v{64+T}, v{M}")
        for w in range(4):
            a(f"v_exp_f32 v{B+2*w}, v{B+2*w}")
        a(f"v_exp_f32 v{F}, v{F}")
        a(f"v_mul_f32 v{L}, v{B}, v{B+1}")
        for w in range(1, 4):
            a(f"v_fmac_f32 v{L}, v{B+2*w}, v{B+2*w+1}")
        a(f"""v_rcp_f32 v{94+T}, v{L}
        v_log_f32 v{L}, v{L}
        v_mul_f32 v{F}, v{F}, v{94+T}
        v_add_f32 v{M}, v{M}, v{L}""")
    a(f"""s_cmp_lg_u32 s3, 0
    s_cbranch_scc1 LN_noml
    v_cndmask_b32 v12, v89, v88, s[90:91]
    v_mov_b32 v13, s67
    v_lshlrev_b32 v3, 6, v1
    s_lshl_b32 s31, s27, 12
    s_lshl_b32 s30, s26, 3
    s_add_u32 s31, s31, s30
    s_add_u32 s31, s31, {ML}
    buffer_store_dwordx2 v[12:13], v3, s[20:23], s31 offen {RSC}
    LN_noml:""")
    for T in range(2):
        A = 16 + 16 * T
        for i in range(8):
            a(f"v_pk_mul_f32 {vr(A+2*i,2)}, {vr(A+2*i,2)}, {vr(92,2)} op_sel:[0,{T}] op_sel_hi:[1,{T}]")
        a(f"s_add_u32 s30, s96, {65536*T}")
        for cs in range(2):
            D = 96 + 8 * T + 4 * cs
            a(f"""v_cvt_pk_bf16_f32 v{D}, v{A+4*cs}, v{A+4*cs+1}
            v_cvt_pk_bf16_f32 v{D+1}, v{A+4*cs+2}, v{A+4*cs+3}
            v_cvt_pk_bf16_f32 v{D+2}, v{A+8+4*cs}, v{A+8+4*cs+1}
            v_cvt_pk_bf16_f32 v{D+3}, v{A+8+4*cs+2}, v{A+8+4*cs+3}
            buffer_store_dwordx4 {vr(D,4)}, v9, s[20:23], s30 offen offset:{512*cs} {RSC}""")
    stamp(a, 16)
    a(f"""s_lshl_b32 s29, s27, 6
    s_lshl_b32 s30, s34, 5
    s_add_u32 s29, s29, s30
    s_lshl_b32 s30, s35, 4
    s_add_u32 s29, s29, s30
    v_add_u32 v12, s29, v6
    v_mul_u32_u24 v12, 768, v12
    v_lshl_add_u32 v12, v7, 3, v12
    s_mul_i32 s66, s26, 96
    v_lshlrev_b32 v13, 4, v7
    s_mul_i32 s29, s24, 1536
    s_mul_i32 s30, s26, 192
    s_add_u32 s29, s29, s30
    s_add_u32 s29, s29, {MOD+12288}""")
    for dt in range(3):
        a(f"buffer_load_dwordx2 {vr(224+2*dt,2)}, v12, s[44:47], s66 offen offset:{32*dt}")
    for dt in range(3):
        a(f"buffer_load_dwordx4 {vr(232+4*dt,4)}, v13, s[20:23], s29 offen offset:{64*dt} {LSC}")
    a(f"""v_lshlrev_b32 v3, 6, v6
    s_lshl_b32 s29, s27, 12
    s_lshl_b32 s30, s34, 11
    s_add_u32 s29, s29, s30
    s_add_u32 s92, s29, {ML}
    s_lshl_b32 s29, s34, 16
    s_add_u32 s29, s29, s97
    s_lshl_b32 s30, s35, 14
    s_add_u32 s93, s29, s30
    s_add_u32 s29, s93, {32768+1008}
    v_lshl_add_u32 v11, v1, 10, s29
    s_add_u32 s29, s92, {4-128}
    v_lshl_add_u32 v10, v1, 3, s29
    v_cmp_gt_u32 vcc, 16, v1
    s_nop 1
    v_cndmask_b32 v11, v10, v11, vcc
    s_lshl_b32 s29, s35, 14
    s_add_u32 s29, s29, {L_V}
    v_add_u32 v8, s29, v2
    v_add_u32 v9, 0x10000, v8
    s_waitcnt vmcnt(10)
    s_barrier""")
    stamp(a, 17)
    poll2(a, "w2", 11, 0xffff, 0xff0000)
    stamp(a, 18)
    a("LN_pv_retry:")
    for T in range(2):
        for i in range(4):
            a(f"buffer_load_dwordx4 {vr(16+16*T+4*i,4)}, v3, s[20:23], s92 offen offset:{1024*T+16*i} {LSC}")
    def pld(ks):
        for T in range(2):
            if ks % 4 == 0:
                a(f"s_add_u32 s{30+T}, s93, {32768*T+1024*ks}")
            a(f"buffer_load_dwordx4 {ar(96+(ks*2+T)*4,4)}, v2, s[20:23], s{30+T} offen offset:{1024*(ks%4)} {LSC}")
    PD = 6
    for ks in range(PD): pld(ks)
    AB = 176
    def ard(ks):
        for dt in range(3):
            off = (dt * 32 + ks) * 1024
            a(f"ds_read_b128 {vr(AB+12*(ks%3)+4*dt,4)}, v{8 if off < 65536 else 9} offset:{off % 65536}")
    ard(0); ard(1)
    AL = 48
    a(f"""s_waitcnt vmcnt({2*PD})
    s_cmp_eq_u32 s35, 0
    s_cselect_b64 vcc, -1, 0
    v_mov_b32 v14, 0""")
    for T in range(2):
        B = 16 + 16 * T
        a(f"""v_max3_f32 v56, v{B}, v{B+2}, v{B+4}
        v_max3_f32 v56, v56, v{B+6}, v{B+8}
        v_max3_f32 v56, v56, v{B+10}, v{B+12}
        v_max_f32 v56, v56, v{B+14}""")
        for jj in range(8):
            a(f"""v_sub_f32 v{B+2*jj}, v{B+2*jj}, v56
            v_xor_b32 v57, s67, v{B+2*jj+1}
            v_or_b32 v14, v14, v57""")
        for jj in range(8): a(f"v_exp_f32 v{B+2*jj}, v{B+2*jj}")
        a(f"""v_add_f32 v57, v{B}, v{B+2}
        v_add_f32 v58, v{B+4}, v{B+6}
        v_add_f32 v59, v{B+8}, v{B+10}
        v_add_f32 v57, v57, v58
        v_add_f32 v58, v{B+12}, v{B+14}
        v_add_f32 v59, v59, v58
        v_add_f32 v57, v57, v59
        v_rcp_f32 v57, v57""")
        for i in range(4):
            a(f"v_cndmask_b32 v{AL+4*T+i}, v{B+8+2*i}, v{B+2*i}, vcc")
        for i in range(4):
            a(f"v_mul_f32 v{AL+4*T+i}, v{AL+4*T+i}, v57")
    stamp(a, 19)
    for ks in range(16):
        if ks + PD < 16: pld(ks + PD)
        vm = 2 * (min(ks + PD, 15) - ks)
        if ks + 2 < 16:
            ard(ks + 2)
            a(f"s_waitcnt vmcnt({vm}) lgkmcnt(6)")
        elif ks + 1 < 16:
            a(f"s_waitcnt vmcnt({vm}) lgkmcnt(3)")
        else:
            a("s_waitcnt vmcnt(0) lgkmcnt(0)")
        sp = ks // 4
        for dt in range(3):
            for T in range(2):
                acc = vr(80 + 24 * sp + (dt * 2 + T) * 4, 4)
                c = "0" if ks % 4 == 0 else acc
                a(f"v_mfma_f32_16x16x32_bf16 {acc}, {vr(AB+12*(ks%3)+4*dt,4)}, {ar(96+(ks*2+T)*4,4)}, {c}")
        if ks % 4 == 1 and sp >= 1:
            fs = sp - 1
            for dt in range(3):
                for T in range(2):
                    for hf in range(2):
                        o = vr(16 + (dt * 2 + T) * 4 + 2 * hf, 2)
                        ac = vr(80 + 24 * fs + (dt * 2 + T) * 4 + 2 * hf, 2)
                        alp = AL + 4 * T + (fs // 2) * 2; e = fs % 2
                        if fs == 0: a(f"v_pk_mul_f32 {o}, {ac}, {vr(alp,2)} op_sel:[0,{e}] op_sel_hi:[1,{e}]")
                        else: a(f"v_pk_fma_f32 {o}, {ac}, {vr(alp,2)}, {o} op_sel:[0,{e},0] op_sel_hi:[1,{e},1]")
    fs = 3
    for dt in range(3):
        for T in range(2):
            for hf in range(2):
                o = vr(16 + (dt * 2 + T) * 4 + 2 * hf, 2)
                ac = vr(80 + 24 * fs + (dt * 2 + T) * 4 + 2 * hf, 2)
                alp = AL + 4 * T + (fs // 2) * 2; e = fs % 2
                a(f"v_pk_fma_f32 {o}, {ac}, {vr(alp,2)}, {o} op_sel:[0,{e},0] op_sel_hi:[1,{e},1]")
    stamp(a, 20)
    a(f"""v_cmp_u_f32 s[90:91], v16, v20
    v_cmp_ne_u32 s[98:99], 0, v14
    s_mul_i32 s30, s3, 3072
    s_add_u32 s30, s30, {L_R}
    v_add_u32 v10, s30, v2
    s_xor_b32 s30, s3, 2
    s_mul_i32 s30, s30, 3072
    s_add_u32 s30, s30, {L_R}
    v_add_u32 v11, s30, v2
    s_or_b64 s[90:91], s[90:91], s[98:99]
    s_cmp_eq_u64 s[90:91], 0
    s_cbranch_scc1 LN_pv_cont
    s_cmp_eq_u32 s95, 0
    s_cbranch_scc1 LN_pv_cont
    s_sub_u32 s95, s95, 1
    s_branch LN_pv_retry0
    LN_pv_cont:""")
    for dt in range(3):
        for i in range(4):
            o0 = 16 + (dt * 2) * 4 + i; o1 = o0 + 4
            a(f"v_cndmask_b32 v{56+4*dt+i}, v{o0}, v{o1}, vcc")
            a(f"v_cndmask_b32 v{68+4*dt+i}, v{o1}, v{o0}, vcc")
    for dt in range(3):
        a(f"ds_write_b128 v10, {vr(56+4*dt,4)} offset:{1024*dt}")
    a("""s_waitcnt lgkmcnt(0)
    s_barrier""")
    for dt in range(3):
        a(f"ds_read_b128 {vr(56+4*dt,4)}, v11 offset:{1024*dt}")
    for dt in range(3):
        a(f"s_waitcnt lgkmcnt({2-dt})")
        for hf in range(2):
            k = 68 + 4 * dt + 2 * hf
            xr = 224 + 2 * dt + hf
            a(f"""v_pk_add_f32 {vr(k,2)}, {vr(k,2)}, {vr(56+4*dt+2*hf,2)}
            v_cvt_pk_bf16_f32 v40, v{k}, v{k+1}
            v_lshlrev_b32 v{k}, 16, v40
            v_and_b32 v{k+1}, 0xffff0000, v40
            v_pk_mul_f32 {vr(k,2)}, {vr(k,2)}, {vr(232+4*dt+2*hf,2)}
            v_cvt_pk_bf16_f32 v40, v{k}, v{k+1}
            v_lshlrev_b32 v{k}, 16, v40
            v_and_b32 v{k+1}, 0xffff0000, v40
            v_lshlrev_b32 v42, 16, v{xr}
            v_and_b32 v43, 0xffff0000, v{xr}
            v_pk_add_f32 {vr(k,2)}, {vr(k,2)}, v[42:43]
            v_cvt_pk_bf16_f32 v{xr}, v{k}, v{k+1}""")
        a(f"buffer_store_dwordx2 {vr(224+2*dt,2)}, v12, s[48:51], s66 offen offset:{32*dt}")
    a(f"""s_or_b32 s29, s28, s3
    s_cmp_lg_u32 s29, 0
    s_cbranch_scc1 LN_noep
    v_lshlrev_b32 v11, 2, v1
    s_mov_b32 s29, 0x01010101""")
    poll(a, "ep", 11, "-1", "ne", "s29", srdn=52)
    a(f"""v_mov_b32 v4, {FL}
    v_mov_b32 v5, s67
    s_mov_b64 exec, 1
    buffer_store_dword v5, v4, s[20:23], 0 offen sc1
    s_mov_b64 exec, -1
    LN_noep:""")
    stamp(a, 21)
    if STAMP:
        a("s_waitcnt vmcnt(0)")
        stamp(a, 22)
    if DBGOUT:
        a("""s_or_b32 s29, s28, s3
        s_cmp_lg_u32 s29, 0
        s_cbranch_scc1 LN_exit
        v_readlane_b32 s29, v15, 0
        s_nop 3
        v_subrev_u32 v15, s29, v15
        v_lshlrev_b32 v4, 2, v1
        s_mov_b64 exec, 0xffff
        buffer_store_dword v15, v4, s[52:55], 0 offen""")
    else:
        stamp_flush(a)
    a("""LN_exit:
    s_endpgm
    LN_s_retry0:
    s_cmp_eq_u32 s94, 0
    s_cbranch_scc1 LN_s_cont
    s_waitcnt vmcnt(0)
    s_sub_u32 s94, s94, 1
    s_branch LN_s_retry
    LN_pv_retry0:
    s_mul_i32 s29, s3, 24576
    s_sub_u32 s98, s86, s29
    s_lshl_b32 s29, s35, 14
    s_add_u32 s98, s98, s29
    s_add_u32 s99, s29, %d""" % L_V)
    for dt in range(3):
        for k in range(16):
            dma_run(a, 98, 99, 32768 * dt, 32768 * dt, k)
    a("""s_waitcnt vmcnt(0)
    s_branch LN_pv_retry""")

def main(out):
    a = Asm()
    a('.amdgcn_target "amdgcn-amd-amdhsa--gfx950"')
    a('.text')
    gen(a)
    txt = HEADER
    txt += f"; @launch grid=(256,1,1) block=(256,1,1) lds={L_TOT}\n"
    txt += a.text()
    txt += f"""    .fill 64, 4, 0xbf800000
LN_codeend:
    s_endpgm
.section .rodata,"a"
.p2align 6
.amdhsa_kernel {KNAME}
  .amdhsa_next_free_vgpr 480
  .amdhsa_next_free_sgpr 102
  .amdhsa_accum_offset 256
  .amdhsa_group_segment_fixed_size 0
  .amdhsa_kernarg_size 64
  .amdhsa_user_sgpr_count 2
  .amdhsa_user_sgpr_kernarg_segment_ptr 1
  .amdhsa_system_sgpr_workgroup_id_x 1
.end_amdhsa_kernel
"""
    open(out, 'w').write(txt)

if __name__ == '__main__':
    if 'stamp' in sys.argv[2:]: STAMP = True
    if 'plain' in sys.argv[2:]: LSC = ''
    if 'local' in sys.argv[2:]: RSC = ''
    if 'dbgout' in sys.argv[2:]: STAMP = True; DBGOUT = True
    main(sys.argv[1] if len(sys.argv) > 1 else 'standalone__dit_adaln_block__diffusion.s')
```
